```python
import torch

def _softmax(x, axis=-1):
    return torch.softmax(x, dim=axis)
def _gelu(x):
    return torch.nn.functional.gelu(x, approximate="tanh")
def _silu(x):
    return torch.nn.functional.silu(x)
def _sigmoid(x):
    return torch.sigmoid(x)
def _layernorm(x, axis=-1, eps=1e-5):
    m = x.mean(dim=axis, keepdim=True)
    v = x.var(dim=axis, keepdim=True, unbiased=False)
    return (x - m) / torch.sqrt(v + eps)
def _scatter_add(tgt, idx, src, axis=0):
    return tgt.clone().index_add_(axis, idx, src)
def _segment_sum(src, seg, n):
    out = torch.zeros((n,) + src.shape[1:], dtype=src.dtype)
    return out.index_add_(0, seg, src)
def _pad(x, pw):
    flat = tuple(v for pair in reversed(pw) for v in pair)
    return torch.nn.functional.pad(x, flat)

kernel_name = 'parallel_sum__ssm_conv_s5__dense_activation_mish__prompt'

def setup_inputs():

    _w = (lambda a: (lambda t: t.to(torch.bfloat16) if t.is_floating_point() else t)(torch.as_tensor(a)))
    def _A_setup():
        B, S, D = 1, 2048, 448
        P = D
        Lambda_re = -0.5 * (lambda _x: torch.exp(torch.as_tensor(_x)))((lambda *s: torch.randn(*s, dtype=torch.bfloat16) * 0.2)(P))
        Lambda_im = (lambda *s: torch.randn(*s, dtype=torch.bfloat16) * 0.8)(P) * 1.0
        B_re = (lambda *s: torch.randn(*s, dtype=torch.bfloat16) * 0.2)(P, D) * (D ** -0.5)
        B_im = (lambda *s: torch.randn(*s, dtype=torch.bfloat16) * 0.2)(P, D) * (D ** -0.5)
        C_re = (lambda *s: torch.randn(*s, dtype=torch.bfloat16) * 0.2)(D, P) * (P ** -0.5)
        C_im = (lambda *s: torch.randn(*s, dtype=torch.bfloat16) * 0.2)(D, P) * (P ** -0.5)
        log_dt = (lambda *s: torch.randn(*s, dtype=torch.bfloat16) * 0.2)(P) * 0.3 - 2.0
        Dskip = (lambda *s: torch.randn(*s, dtype=torch.bfloat16) * 0.05)(D)
        return {
            "x": _w((lambda *s: torch.randn(*s, dtype=torch.bfloat16) * 0.05)(B, S, D)),
            "Lambda_re": _w(Lambda_re),
            "Lambda_im": _w(Lambda_im),
            "B_re": _w(B_re),
            "B_im": _w(B_im),
            "C_re": _w(C_re),
            "C_im": _w(C_im),
            "log_dt": _w(log_dt),
            "Dskip": _w(Dskip),
        }
    _A_in = _A_setup()

    def _B_setup():
        B, S, D, F = 1, 2048, 448, 1792
        return {
            "x": _w((lambda *s: torch.randn(*s, dtype=torch.bfloat16) * 0.05)(B, S, D)),
            "w1": _w((lambda *s: torch.randn(*s, dtype=torch.bfloat16) * 0.8)(D, F) * (D ** -0.5)),
            "b1": _w((lambda *s: torch.randn(*s, dtype=torch.bfloat16) * 0.2)(F)),
            "w2": _w((lambda *s: torch.randn(*s, dtype=torch.bfloat16) * 0.2)(F, D) * (F ** -0.5)),
        }
    _B_in = _B_setup()

    return {
        "A_x": _A_in["x"],
        "A_Lambda_re": _A_in["Lambda_re"],
        "A_Lambda_im": _A_in["Lambda_im"],
        "A_B_re": _A_in["B_re"],
        "A_B_im": _A_in["B_im"],
        "A_C_re": _A_in["C_re"],
        "A_C_im": _A_in["C_im"],
        "A_log_dt": _A_in["log_dt"],
        "A_Dskip": _A_in["Dskip"],
        "B_x": _B_in["x"],
        "B_w1": _B_in["w1"],
        "B_b1": _B_in["b1"],
        "B_w2": _B_in["w2"],
    }

def reference(A_x, A_Lambda_re, A_Lambda_im, A_B_re, A_B_im, A_C_re, A_C_im, A_log_dt, A_Dskip, B_x, B_w1, B_b1, B_w2):
    def _A_ref(x, Lambda_re, Lambda_im, B_re, B_im, C_re, C_im, log_dt, Dskip):
        Bsz, L, H = x.shape
        Lam = Lambda_re + 1j * Lambda_im
        Bmat = B_re + 1j * B_im
        Cmat = C_re + 1j * C_im
        dt = torch.exp(log_dt)
        Lam_bar = torch.exp(dt * Lam)
        B_bar = ((Lam_bar - 1.0) / Lam)[:, None] * Bmat
        Bu = torch.einsum("bld,pd->blp", x + 0j, B_bar)
        h = torch.zeros_like(Bu[:, 0, :])
        hs = []
        for t in range(L):
            h = Lam_bar[None, :] * h + Bu[:, t, :]
            hs.append(h)
        hseq = torch.stack(hs, 1)
        y = 2.0 * torch.einsum("blp,dp->bld", hseq, Cmat).real + x * Dskip[None, None, :]
        return y

    def _B_ref(x, w1, b1, w2):
        h = torch.einsum("bsd,df->bsf", x, w1) + b1
        sp = torch.log1p(torch.exp(-torch.abs(h))) + torch.where(h > 0, h, torch.zeros_like(h))
        act = h * torch.tanh(sp)
        return torch.einsum("bsf,fd->bsd", act, w2)

    x = A_x
    xn = _layernorm(x, axis=-1)
    return x + _A_ref(xn, A_Lambda_re, A_Lambda_im, A_B_re, A_B_im, A_C_re, A_C_im, A_log_dt, A_Dskip) + _B_ref(xn, B_w1, B_b1, B_w2)
```

```python
NAME = "parallel_sum__ssm_conv_s5__dense_activation_mish__prompt"
STAMP_OFF = 200 * 1024 * 1024

class Asm:
    def __init__(self):
        self.lines = []
        self.nlabel = 0
    def __call__(self, s):
        for l in s.strip("\n").split("\n"):
            self.lines.append(l if l.rstrip().endswith(":") else "    " + l.strip())
    def label(self, base="L"):
        self.nlabel += 1
        return "%s_%d" % (base, self.nlabel)
    def text(self):
        return "\n".join(self.lines) + "\n"

def kernel_head(name):
    return ".globl %s\n.p2align 8\n.type %s,@function\n%s:\n" % (name, name, name)

def kernel_desc(name, vgpr, sgpr, accum):
    return (".amdhsa_kernel %s\n  .amdhsa_next_free_vgpr %d\n  .amdhsa_next_free_sgpr %d\n  .amdhsa_accum_offset %d\n"
            "  .amdhsa_group_segment_fixed_size 0\n  .amdhsa_kernarg_size 128\n  .amdhsa_user_sgpr_count 2\n"
            "  .amdhsa_user_sgpr_kernarg_segment_ptr 1\n  .amdhsa_system_sgpr_workgroup_id_x 1\n"
            "  .amdhsa_float_denorm_mode_32 3\n.end_amdhsa_kernel\n" % (name, vgpr, sgpr, accum))

def single(body, grid, block, lds, vgpr=256, sgpr=102, accum=256, header=""):
    n = NAME + "_kernel"
    return (header + "; @launch grid=(%d,1,1) block=(%d,1,1) lds=%d\n.amdgcn_target \"amdgcn-amd-amdhsa--gfx950\"\n.text\n" % (grid, block, lds)
            + kernel_head(n) + body + ".section .rodata,\"a\"\n.p2align 6\n" + kernel_desc(n, vgpr, sgpr, accum))

def multi(kernels, launches, header=""):
    s = header
    for (k, grid, block, lds) in launches:
        s += "; @launch kernel=%s grid=(%d,1,1) block=(%d,1,1) lds=%d\n" % (k, grid, block, lds)
    s += ".amdgcn_target \"amdgcn-amd-amdhsa--gfx950\"\n.text\n"
    for (k, body, v, sg, ac) in kernels:
        s += kernel_head(k) + body
    s += ".section .rodata,\"a\"\n"
    for (k, body, v, sg, ac) in kernels:
        s += ".p2align 6\n" + kernel_desc(k, v, sg, ac)
    return s
```

```python
import re

TRANS = ("v_exp_f32", "v_log_f32", "v_rcp_f32", "v_rsq_f32", "v_sqrt_f32", "v_sin_f32", "v_cos_f32")
_REG = re.compile(r"^-?\|?(?:abs\()?([vas])(?:(\d+)|\[(\d+):(\d+)\])\)?\|?$")


def regs_of(op):
    op = op.strip()
    if op in ("vcc", "vcc_lo", "vcc_hi"):
        return {"vcc"}
    if op == "exec":
        return {"exec"}
    if op == "m0":
        return {"m0"}
    m = _REG.match(op)
    if not m:
        return set()
    k = m.group(1)
    if m.group(2) is not None:
        return {k + m.group(2)}
    return {k + str(i) for i in range(int(m.group(3)), int(m.group(4)) + 1)}


class Ins:
    def __init__(self, text):
        self.text = text
        body = text.split(";")[0].strip()
        parts = body.split(None, 1)
        self.op = parts[0]
        rest = parts[1] if len(parts) > 1 else ""
        ops = [o.strip() for o in re.split(r",(?![^\[]*\])", rest)] if rest else []
        if ops:
            last = ops[-1].split()
            ops[-1] = last[0]
            self.mods = last[1:]
        else:
            self.mods = []
        self.ops = ops
        op = self.op
        R = [regs_of(o) for o in ops]
        U = lambda l: set().union(*l) if l else set()
        self.kind = "other"
        self.w, self.r, self.c = set(), set(), set()
        self.dpp = "_dpp" in op
        self.wide_store = False
        if op.startswith("v_mfma"):
            self.kind = "mfma"
            self.passes = 8 if "32x32" in op else 4
            self.w, self.r, self.c = R[0], R[1] | R[2], R[3]
        elif op.startswith("ds_read") or op.startswith("ds_bpermute") or op.startswith("ds_swizzle"):
            self.kind = "ds"
            self.w, self.r = R[0], U(R[1:])
        elif op.startswith("ds_"):
            self.kind = "ds"
            self.r = U(R)
        elif op.startswith("buffer_load") or op.startswith("global_load"):
            self.kind = "vm"
            if "lds" in self.mods:
                self.r = U(R) | {"m0"}
            else:
                self.w, self.r = R[0], U(R[1:])
        elif op.startswith("buffer_store") or op.startswith("global_store"):
            self.kind = "vm"
            self.r = U(R)
            if op.endswith("x4") or op.endswith("x3"):
                self.wide_store = True
                self.data = R[0] if op.startswith("buffer") else R[1]
        elif op.startswith("buffer_"):
            self.kind = "vm"
        elif op.startswith("v_"):
            self.kind = "valu"
            self.w, self.r = set(R[0]), U(R[1:])
            if op.startswith(("v_fmac", "v_dot2c", "v_writelane")):
                self.r |= R[0]
            if op.startswith("v_permlane") and "swap" in op:
                self.w = R[0] | R[1]
                self.r = R[0] | R[1]
            if "_co_" in op:
                self.w = R[0] | R[1]
                self.r = U(R[2:])
            if self.dpp and "bound_ctrl" not in " ".join(self.mods):
                self.r |= R[0]
        elif op.startswith(("s_load", "s_memtime", "s_memrealtime")):
            self.kind = "smem"
            self.w, self.r = R[0], U(R[1:])
        elif op.startswith(("s_waitcnt", "s_barrier", "s_nop", "s_branch", "s_cbranch", "s_endpgm", "s_setprio", "s_sleep")):
            self.kind = "ctl"
        elif op.startswith(("s_cmp", "s_bitcmp")):
            self.kind = "salu"
            self.r = U(R)
        elif op.startswith("s_"):
            self.kind = "salu"
            self.w, self.r = set(R[0]), U(R[1:])
            if "saveexec" in op:
                self.w |= {"exec"}
        self.trans = op.startswith(TRANS)
        self.dot = op.startswith("v_dot")
        self.states = 1
        if op == "s_nop":
            self.states = int(ops[0], 0) + 1


def need(p, c):
    n = 0
    isv = lambda s: {x for x in s if x[0] in "va" and x != "vcc"}
    iss = lambda s: {x for x in s if x[0] == "s" or x == "vcc"}
    if p.kind == "valu":
        wv = isv(p.w)
        if c.kind == "mfma" and wv & (c.r | c.c):
            n = max(n, 2)
        if c.kind == "valu":
            if c.dpp and wv & c.r:
                n = max(n, 2)
            if c.op.startswith("v_permlane") and wv & c.r:
                n = max(n, 2)
            if c.op.startswith(("v_readlane", "v_readfirstlane")) and wv & c.r:
                n = max(n, 1)
            if iss(p.w) & c.r:
                n = max(n, 4 if c.op.startswith(("v_readlane", "v_writelane")) else 2)
        if p.trans and wv & (c.r | c.c):
            n = max(n, 1)
        if p.dot and wv & (c.r | c.w | c.c):
            if c.op == p.op:
                if wv & (regs_of(c.ops[1]) | regs_of(c.ops[2])):
                    n = max(n, 3)
            else:
                n = max(n, 3)
        if c.kind == "vm" and iss(p.w) & c.r:
            n = max(n, 5)
        if c.kind in ("salu", "smem") and iss(p.w) & c.r:
            n = max(n, 1)
    elif p.kind == "mfma":
        big = {8: 12, 4: 8}[p.passes]
        if c.kind == "mfma":
            if p.w & c.r:
                n = max(n, big)
            if p.w & c.c and not (p.w == c.c and p.passes == c.passes):
                n = max(n, big - 2)
            if p.w & c.w and p.w != c.c:
                n = max(n, big - 2)
        elif c.kind in ("valu", "vm", "ds"):
            if p.w & (c.r | c.w):
                n = max(n, big)
            if p.c & c.w:
                n = max(n, {8: 7, 4: 3}[p.passes])
    elif p.kind == "salu":
        if "m0" in p.w and "m0" in c.r and c.kind == "vm":
            n = max(n, 1)
    elif p.kind == "vm" and p.wide_store:
        if p.data & c.w:
            n = max(n, 2)
    return n


class Emit:
    def __init__(self):
        self.out = []
        self.hist = []
        self.vm = []
        self.ds = []
        self.smem = set()
        self.auto_waits = 0
        self.auto_nops = 0
        self.log = []
        self.where = ""

    def raw(self, s):
        for l in s.strip("\n").split("\n"):
            l = l.strip()
            if l:
                self.out.append(l if l.endswith(":") else "    " + l)

    def comment(self, s):
        self.out.append("    ; " + s)

    def _push(self, ins):
        self.out.append("    " + ins.text)
        self.hist.append(ins)
        if len(self.hist) > 24:
            self.hist.pop(0)

    def _apply_wait(self, vm=None, lgkm=None):
        if vm is not None:
            self.vm = self.vm[len(self.vm) - vm:] if vm else []
        if lgkm is not None:
            self.ds = self.ds[len(self.ds) - lgkm:] if lgkm else []
            if lgkm == 0:
                self.smem = set()

    def wait(self, vm=None, lgkm=None, force=False):
        if vm is not None and vm >= len(self.vm) and not force:
            vm = None
        if lgkm is not None and lgkm >= len(self.ds) and not (lgkm == 0 and self.smem) and not force:
            lgkm = None
        if vm is None and lgkm is None:
            return
        t = "s_waitcnt"
        if vm is not None:
            vm = min(vm, 63, len(self.vm))
            t += " vmcnt(%d)" % vm
        if lgkm is not None:
            lgkm = min(lgkm, 15, len(self.ds))
            t += " lgkmcnt(%d)" % lgkm
        self._push(Ins(t))
        self._apply_wait(vm, lgkm)

    def vm_after(self, tag):
        for i in range(len(self.vm) - 1, -1, -1):
            if self.vm[i][1] == tag:
                return len(self.vm) - 1 - i
        return None

    def __call__(self, s, tag=None):
        for l in s.strip("\n").split("\n"):
            l = l.strip()
            if not l:
                continue
            if l.startswith(";"):
                self.out.append("    " + l)
                continue
            if l.endswith(":"):
                self.out.append(l)
                continue
            self.one(Ins(l), tag)

    def one(self, ins, tag=None):
        if ins.op == "s_waitcnt":
            vm = re.search(r"vmcnt\((\d+)\)", ins.text)
            lg = re.search(r"lgkmcnt\((\d+)\)", ins.text)
            self._push(ins)
            vm = min(int(vm.group(1)), len(self.vm)) if vm else None
            lg = min(int(lg.group(1)), len(self.ds)) if lg else None
            self._apply_wait(vm, lg)
            return
        touched = ins.r | ins.w | ins.c
        vm = lg = None
        for i in range(len(self.vm) - 1, -1, -1):
            if self.vm[i][0] & touched:
                vm = len(self.vm) - 1 - i
                break
        for i in range(len(self.ds) - 1, -1, -1):
            if self.ds[i][0] & touched:
                lg = len(self.ds) - 1 - i
                break
        if self.smem & touched:
            lg = 0
        if vm is not None or lg is not None:
            self.auto_waits += 1
            self.log.append("%s: wait vm=%s lgkm=%s before %s" % (self.where, vm, lg, ins.text))
            self.wait(vm, lg)
        dist = 0
        pad = 0
        for p in reversed(self.hist):
            pad = max(pad, need(p, ins) - dist)
            dist += p.states
            if dist >= 20:
                break
        if pad > 0:
            self.auto_nops += 1
            self.log.append("%s: nop %d before %s" % (self.where, pad, ins.text))
            self._push(Ins("s_nop %d" % (pad - 1)))
        self._push(ins)
        if ins.kind == "vm":
            self.vm.append((set(ins.w), tag))
            assert len(self.vm) <= 63, "vmcnt overflow at " + self.where
        elif ins.kind == "ds":
            self.ds.append((set(ins.w), tag))
        elif ins.kind == "smem":
            self.smem |= ins.w

    def text(self):
        return "\n".join(self.out) + "\n"
```

```python
import struct
import sys
from asmlib import NAME, STAMP_OFF, single
from emit import Emit, Ins

HEADER = open("header.txt").read()

XN, ACT, HT = 0, 0, 32768
RING, SLOT, NSLOT = 57344, 16384, 6
RES = RING + 5 * SLOT
LDS_BYTES = RING + NSLOT * SLOT
WS_XCC, WS_FLAG, WS_E, WS_IN, WS_SIZE = 4096, 16384, 131072, 1 << 20, 16 << 20
pX, pLre, pLim, pBre, pBim, pCre, pCim, pDt, pDs, pW1, pB1, pW2, pOut, pWs = 4, 6, 8, 10, 12, 14, 16, 18, 20, 24, 26, 28, 30, 34
sX, sBre, sBim, sCre, sCim, sCown, sW1, sW2, sOut, sE, sIn = 36, 40, 44, 48, 52, 56, 60, 64, 68, 72, 76
sRot, sSl, sW, sG, sM, sM0, sT, sT2, sTag = 80, 87, 90, 91, 92, 93, 94, 95, 96
sA, sB, sC, sD = 98, 99, 100, 101
sOwnW, sOwnC, sSend, sRecv, sFlagOut, sRowOff, sSelLo, sSelHi, sLn2, sFast = 4, 5, 6, 9, 10, 13, 21, 22, 24, 26
sStamp = 28
vLane16, vN, vH = 1, 2, 3
accS, accA, accB, accR = 16, 48, 80, (48, 112, 144)
accO, vSum, vRes, vGather = 80, 96, 176, 80
vB, vW1, vW2, vC = 192, 196, 200, 204
rX, rB, rC = 208, 212, 220
rW1, rW2, rH, rActO, wAct, wH = 228, 230, 232, 236, 237, 238
cS1, cS2, cK1, cK2, cA16, cM0, cM1, cA64, cQ, cNs, cCnt = 239, 240, 241, 242, 243, 245, 247, 249, 251, 253, 254
vEst, vEld, vOut, vFlag = 255, 4, 5, 6
tmp = 8
vX, vXP, vXU = 14, 96, 16
LOG2E, LN2 = 1.4426950408889634, 0.6931471805599453


def f32(x):
    return struct.unpack("<I", struct.pack("<f", x))[0]


def bf16_rne(x):
    u = f32(x)
    return ((u + 0x7FFF + ((u >> 16) & 1)) >> 16) & 0xFFFF


def bf16_val(h):
    return struct.unpack("<f", struct.pack("<I", h << 16))[0]


def R(k, b, n):
    return "%s[%d:%d]" % (k, b, b + n - 1)


QP = "quad_perm:[1,0,3,2] row_mask:0xf bank_mask:0xf"


def cost(text):
    op = text.split()[0]
    if op.startswith(("v_exp", "v_rcp", "v_sin", "v_cos", "v_sqrt", "v_rsq")):
        return 2.4
    if op.startswith("ds_write"):
        return 5
    if op.startswith(("buffer_", "global_")):
        return 3.4
    if op.startswith("s_"):
        return 0.7
    return 1.05


def is_mem(text):
    return text.split()[0].startswith(("ds_", "buffer_", "global_"))


class Gen:
    def __init__(self, **opt):
        self.o = dict(stamps=0, helpers=1, send="sc1", outf="sc1", dist=6, dbg=None, spin=1 << 16)
        self.o.update(opt)
        self.e = Emit()
        self.tail_blocks = []
        self.nstamp = 0

    def stamp(self):
        if self.o["stamps"]:
            k = self.nstamp
            self.e("%s s[2:3]\ns_waitcnt lgkmcnt(0)" % ("s_memtime" if self.o.get("cyc") else "s_memrealtime"))
            self.e("v_writelane_b32 v7, s2, %d\nv_writelane_b32 v7, s3, %d" % (2 * k, 2 * k + 1))
            self.nstamp += 1

    def srd(self, s, p, size, shift=0):
        e = self.e
        if shift:
            e("s_sub_u32 s%d, s%d, %d\ns_subb_u32 s%d, s%d, 0\ns_and_b32 s%d, s%d, 0xffff" % (s, p, shift, s + 1, p + 1, s + 1, s + 1))
        else:
            e("s_mov_b32 s%d, s%d\ns_and_b32 s%d, s%d, 0xffff" % (s, p, s + 1, p + 1))
        e("s_mov_b32 s%d, %d\ns_mov_b32 s%d, 0x20000" % (s + 2, size + shift, s + 3))

    def stage_kind(self, s):
        if s < 7:
            return ("B", s)
        if s < 21:
            return ("W1", (s - 7) // 7, (s - 7) % 7)
        if s < 33:
            return ("W2", (s - 21) // 6, ((s - 21) % 6) // 2, (s - 21) % 2)
        if s < 39:
            return ("C", (s - 33) // 2, (s - 33) % 2)
        if s < 41:
            return ("OW", s - 39)
        return ("OC",)

    def dma_items(self, s):
        k = self.stage_kind(s)
        head = ["s_add_u32 m0, s%d, %d" % (sM0, (s % NSLOT) * SLOT)]
        if k[0] == "B":
            so = "s%d" % (sRot + k[1])
            head.append("s_nop 0")
            srcs = [(vB + i, sBre if i < 2 else sBim) for i in range(4)]
        elif k[0] == "W1":
            so = "s%d" % sT
            head.append("s_mul_i32 s%d, s%d, 1792" % (sT, sRot + k[2]))
            if k[1]:
                head.append("s_add_u32 s%d, s%d, 256" % (sT, sT))
            srcs = [(vW1 + i, sW1) for i in range(4)]
        elif k[0] == "W2":
            so = "s%d" % sT
            head.append("s_add_u32 s%d, s%d, %d" % (sT, sSl + k[2], (128 * k[1] + 64 * k[3]) * 896))
            srcs = [(vW2 + i, sW2) for i in range(4)]
        elif k[0] == "C":
            so = "s%d" % sT
            head.append("s_mul_i32 s%d, s%d, 448" % (sT, sSl + k[1]))
            srcs = [(vC + i, sCim if k[2] else sCre) for i in range(4)]
        elif k[0] == "OW":
            so = "s%d" % sT
            head.append("s_add_u32 s%d, s%d, %d" % (sT, sOwnW, 128 * k[1] * 896))
            srcs = [(vW2 + i, sW2) for i in range(4)]
        else:
            so = "s%d" % sOwnC
            head.append("s_nop 0")
            srcs = [(vC + i, sCown) for i in range(4)]
        items = []
        for i, (v, srd) in enumerate(srcs):
            ld = "buffer_load_dwordx4 v%d, %s, %s offen offset:%d lds" % (v, R("s", srd, 4), so, 1024 * i)
            items.append((head if i == 0 else []) + [(ld, "dma%d" % s)])
        return items

    def own_base(self, s):
        return 64 * ((s - 39) % 2)

    def read_items(self, s):
        k = self.stage_kind(s)
        hi = (s % NSLOT) // 3
        so = ((s % NSLOT) % 3) * SLOT
        wb = 224 + 16 * (s % 2)
        b128 = lambda a, v, off: ["ds_read_b128 %s, v%d offset:%d" % (R("a", a, 4), v, off)]
        tr = lambda a, v, off, st: ["ds_read_b64_tr_b16 %s, v%d offset:%d" % (R("a", a + 2 * x, 2), v, off + st * x) for x in range(2)]
        it = []
        if k[0] == "B":
            for q in range(4):
                it.append(b128(wb + 4 * q, rB + 4 * hi + q, so))
                for mh in range(2):
                    it.append(b128((s * 8 + q * 2 + mh) * 4, rX + q, s * 8192 + mh * 4096))
        elif k[0] == "W1":
            it = [tr(wb + 4 * q, rW1 + hi, so + 2048 * q, 512) for q in range(4)]
        elif k[0] == "W2":
            for q in range(4):
                it.append(tr(wb + 4 * q, rW2 + hi, so + 2048 * q, 1024))
                if k[2] == 0:
                    for mh in range(2):
                        kk = 4 * k[3] + q
                        it.append(b128(64 * k[1] + (kk * 2 + mh) * 4, vLane16, ACT + k[1] * 16384 + kk * 2048 + mh * 1024))
        elif k[0] == "C":
            for q in range(4):
                it.append(b128(wb + 4 * q, rC + 4 * hi + q, so))
                if k[1] == 0:
                    for mh in range(2):
                        it.append(tr(128 + ((4 * k[2] + q) * 2 + mh) * 4, rH + 2 * k[2] + mh, 8192 * k[2] + 2048 * q, 512))
        elif k[0] == "OW":
            ob = self.own_base(s)
            for kk in range(8):
                it.append(tr(ob + 32 + 4 * kk, rW2 + 1, so + 2048 * kk, 1024))
                it.append(b128(ob + 4 * kk, rActO, ACT + k[1] * 16384 + kk * 2048))
        else:
            ob = self.own_base(s)
            for kk in range(8):
                it.append(b128(ob + 32 + 4 * kk, rC + 4 + kk % 4, so + 8192 * (kk // 4)))
                it.append(tr(ob + 4 * kk, rH + 2 * (kk // 4), 8192 * (kk // 4) + 2048 * (kk % 4), 512))
        return it

    def mfmas(self, s):
        k = self.stage_kind(s)
        wb = 224 + 16 * (s % 2)
        out = []
        M = lambda d, a, b, c: "v_mfma_f32_32x32x16_bf16 %s, %s, %s, %s" % (R("v", d, 16), R("a", a, 4), R("a", b, 4), "0" if c is None else R("v", c, 16))
        if k[0] == "B":
            for q in range(4):
                for mh in range(2):
                    d = accS + 16 * mh
                    out.append(M(d, (s * 8 + q * 2 + mh) * 4, wb + 4 * q, None if s == 0 and q == 0 else d))
        elif k[0] == "W1":
            acc = accB if k[1] else accA
            for q in range(4):
                for mh in (1, 0):
                    d = acc + 16 * mh
                    out.append(M(d, wb + 4 * q, (k[2] * 8 + q * 2 + mh) * 4, acc if k[2] == 0 and q == 0 else d))
        elif k[0] in ("W2", "C"):
            ab, pair, kh = (64 * k[1], k[2], k[3]) if k[0] == "W2" else (128, k[1], k[2])
            for q in range(4):
                for mh in range(2):
                    d = accR[pair] + 16 * mh
                    first = k[0] == "W2" and k[1] == 0 and kh == 0 and q == 0
                    out.append(M(d, ab + ((4 * kh + q) * 2 + mh) * 4, wb + 4 * q, None if first else d))
        else:
            ob = self.own_base(s)
            for kk in range(8):
                out.append(M(accO, ob + 4 * kk, ob + 32 + 4 * kk, None if s == 39 and kk == 0 else accO))
        return out

    def cmul(self, dr, di, ar, ai, br, bi):
        return ["v_mul_f32 v%d, v%d, v%d" % (dr, ar, br), "v_mul_f32 v%d, v%d, v%d" % (di, ar, bi),
                "v_fma_f32 v%d, -v%d, v%d, v%d" % (dr, ai, bi, dr), "v_fmac_f32 v%d, v%d, v%d" % (di, ai, br)]

    def csq(self, dr, di, ar, ai):
        return ["v_mul_f32 v%d, v%d, v%d" % (dr, ar, ar), "v_add_f32 v%d, v%d, v%d" % (di, ar, ar),
                "v_fma_f32 v%d, -v%d, v%d, v%d" % (dr, ai, ai, dr), "v_mul_f32 v%d, v%d, v%d" % (di, di, ai)]

    def task_params(self):
        lr, li, dt, ar, ai, t0, t1, t2, sg = 112, 113, 114, 115, 116, 117, 118, 119, 120
        P = [122 + 2 * i for i in range(11)]
        t = []
        t += ["v_lshlrev_b32 v%d, 16, v%d" % (dt, dt), "v_lshlrev_b32 v%d, 16, v%d" % (lr, lr), "v_lshlrev_b32 v%d, 16, v%d" % (li, li),
              "v_mul_f32 v%d, 0x%x, v%d" % (dt, f32(LOG2E), dt), "v_xor_b32 v%d, 0x80000000, v%d" % (li, li), "v_exp_f32 v%d, v%d" % (dt, dt),
              "v_mul_f32 v%d, v%d, v%d" % (t2, lr, lr), "v_cvt_pk_bf16_f32 v%d, v%d, v%d" % (dt, dt, dt),
              "v_fmac_f32 v%d, v%d, v%d" % (t2, li, li), "v_lshlrev_b32 v%d, 16, v%d" % (dt, dt), "v_rcp_f32 v%d, v%d" % (t2, t2),
              "v_mul_f32 v%d, v%d, v%d" % (t0, dt, lr), "v_mul_f32 v%d, v%d, v%d" % (t1, dt, li),
              "v_mul_f32 v%d, 0x%x, v%d" % (t0, f32(LOG2E), t0), "v_mul_f32 v%d, 0.15915494, v%d" % (t1, t1),
              "v_exp_f32 v%d, v%d" % (t0, t0), "v_rndne_f32 v%d, v%d" % (ar, t1), "v_sub_f32 v%d, v%d, v%d" % (t1, t1, ar),
              "v_cos_f32 v%d, v%d" % (ar, t1), "v_sin_f32 v%d, v%d" % (ai, t1),
              "v_xor_b32 v%d, 0x80000000, v%d" % (sg, cNs),
              "v_mul_f32 v%d, v%d, v%d" % (P[0], ar, t0), "v_mul_f32 v%d, v%d, v%d" % (P[0] + 1, ai, t0)]
        a = P[0]
        t += ["v_add_f32 v%d, -1.0, v%d" % (t0, a), "v_add_f32 v%d, v%d, v%d" % (t2, t2, t2),
              "v_mul_f32 v%d, v%d, v%d" % (cK1, t0, lr), "v_mul_f32 v%d, v%d, v%d" % (cK2, a + 1, lr),
              "v_fmac_f32 v%d, v%d, v%d" % (cK1, a + 1, li), "v_fma_f32 v%d, -v%d, v%d, v%d" % (cK2, t0, li, cK2),
              "v_mul_f32 v%d, v%d, v%d" % (cK1, cK1, t2), "v_mul_f32 v%d, v%d, v%d" % (cK2, cK2, t2),
              "v_mul_f32 v%d, v%d, v%d" % (cK1, cK1, cNs),
              "v_mov_b32 v%d, v%d" % (cS1, a), "v_mul_f32 v%d, v%d, v%d" % (cS2, a + 1, sg)]
        for i in range(1, 11):
            t += self.csq(P[i], P[i] + 1, P[i - 1], P[i - 1] + 1)
        t += ["v_mov_b32 v%d, v%d" % (cA16, P[4]), "v_mul_f32 v%d, v%d, v%d" % (cA16 + 1, P[4] + 1, sg),
              "v_mov_b32 v%d, v%d" % (cA64, P[6]), "v_mov_b32 v%d, v%d" % (cA64 + 1, P[6] + 1),
              "v_cmp_lt_u32 vcc, 0, v%d" % vH,
              "v_cndmask_b32 v%d, 1.0, v%d, vcc" % (t0, P[4]), "v_cndmask_b32 v%d, 0, v%d, vcc" % (t1, P[4] + 1),
              "v_cndmask_b32 v%d, 1.0, v%d, vcc" % (P[10], P[10]), "v_cndmask_b32 v%d, 0, v%d, vcc" % (P[10] + 1, P[10] + 1),
              "v_cmp_lt_f32 vcc, 0, v%d" % sg]
        t += self.cmul(cM0, cM0 + 1, a, a + 1, t0, t1)
        t += ["v_cndmask_b32 v%d, 1.0, v%d, vcc" % (P[9], P[9]), "v_cndmask_b32 v%d, 0, v%d, vcc" % (P[9] + 1, P[9] + 1)]
        t += self.cmul(cM1, cM1 + 1, cM0, cM0 + 1, P[5], P[5] + 1)
        t += self.cmul(t0, t1, P[9], P[9] + 1, P[10], P[10] + 1)
        t += ["v_mul_f32 v%d, v%d, v%d" % (cM0 + 1, cM0 + 1, sg), "v_mul_f32 v%d, v%d, v%d" % (cM1 + 1, cM1 + 1, sg),
              "v_cndmask_b32 v%d, v%d, v%d, vcc" % (cQ, t0, t1), "v_cndmask_b32 v%d, -v%d, v%d, vcc" % (cQ + 1, t1, t0)]
        return t

    def lmad(self, d, z, x):
        return ["v_fmac_f32 v%d, v%d, v%d" % (d, z, x), "v_fmac_f32_dpp v%d, v%d, v%d %s" % (d, x, z + 1, QP)]

    def task_scan1(self):
        t = []
        for j in range(0, 32, 4):
            t += ["v_mul_f32_dpp v%d, v%d, v%d %s bound_ctrl:0" % (tmp + x, accS + j + x, cK2, QP) for x in range(4)]
            t += ["v_fma_f32 v%d, v%d, v%d, v%d" % (accS + j + x, cK1, accS + j + x, tmp + x) for x in range(4)]
        prev = [accS, accS + 16]
        for j in range(1, 16):
            cur = [tmp + 2 * (j % 2), tmp + 2 * (j % 2) + 1]
            t += ["v_fma_f32 v%d, v%d, v%d, v%d" % (cur[c], cS1, prev[c], accS + 16 * c + j) for c in range(2)]
            t += ["v_fmac_f32_dpp v%d, v%d, v%d %s" % (cur[c], prev[c], cS2, QP) for c in range(2)]
            prev = cur
        e0, e1 = prev
        g = 112
        t += ["v_mov_b32 v%d, v%d" % (tmp, e0), "v_mov_b32 v%d, v%d" % (g, e1), "v_mov_b32 v%d, s%d" % (g + 2, sTag), "v_mov_b32 v%d, s%d" % (g + 3, sTag + 1),
              "v_permlane32_swap_b32 v%d, v%d" % (e0, tmp), "v_permlane32_swap_b32 v%d, v%d" % (e1, g),
              "v_cmp_lt_u32 vcc, 0, v%d" % vH]
        t += self.lmad(tmp, cA16, e0) + ["v_cndmask_b32 v%d, 0, v%d, vcc" % (e0, e0)]
        t += self.lmad(e1, cA16, tmp) + self.lmad(accS, cS1, e0)
        t += self.lmad(g, cA16, e1) + ["v_cndmask_b32 v%d, v%d, v%d, vcc" % (tmp, tmp, e1)]
        t += ["s_nop 0", "v_mov_b32_dpp v%d, v%d %s bound_ctrl:0" % (g + 1, g, QP)]
        t += self.lmad(accS + 16, cS1, tmp)
        t += ["buffer_store_dwordx4 %s, v%d, %s, 0 offen sc1" % (R("v", g, 4), vEst, R("s", sE, 4))]
        return t

    def task_mish(self, part):
        acc = accB if part else accA
        t = []
        for mh in (1, 0):
            for z in range(2):
                for b in range(2):
                    r = [acc + 16 * mh + 8 * z + 4 * b + x for x in range(4)]
                    w = [tmp + x for x in range(4)]
                    u = [tmp + 4 + x for x in range(4)]
                    t += ["v_exp_f32 v%d, v%d" % (w[x], r[x]) for x in range(4)]
                    t += ["v_fma_f32 v%d, v%d, 0.5, 1.0" % (u[x], w[x]) for x in range(4)]
                    t += ["v_fma_f32 v%d, v%d, v%d, 1.0" % (u[x], w[x], u[x]) for x in range(4)]
                    t += ["v_rcp_f32 v%d, v%d" % (u[x], u[x]) for x in range(4)]
                    t += ["v_fma_f32 v%d, -v%d, v%d, v%d" % (r[x], r[x], u[x], r[x]) for x in range(4)]
                    d = acc + 16 * mh + 8 * z + 2 * b
                    t += ["v_cvt_pk_bf16_f32 v%d, v%d, v%d" % (d + x, r[2 * x], r[2 * x + 1]) for x in range(2)]
                t += ["ds_write_b128 v%d, %s offset:%d" % (wAct, R("v", acc + 16 * mh + 8 * z, 4), ACT + part * 16384 + z * 2048 + mh * 1024)]
        return t

    def gather_loads(self):
        return ["buffer_load_dwordx4 %s, v%d, %s, 0 offen offset:%d sc1" % (R("v", vGather + 4 * u, 4), vEld, R("s", sE, 4), 256 * u) for u in range(7, -1, -1)]

    def gather_count(self):
        t = ["v_mov_b32 v%d, 0" % tmp]
        for u in range(7, -1, -1):
            t += ["v_cmp_eq_u64 vcc, %s, %s" % (R("s", sTag, 2), R("v", vGather + 4 * u + 2, 2)), "v_addc_co_u32 v%d, vcc, 0, v%d, vcc" % (tmp, tmp)]
        t += ["v_cmp_ne_u32 vcc, v%d, v%d" % (tmp, cCnt)]
        return t

    def task_carry(self):
        t = self.gather_count() + ["s_nop 4", "s_cbranch_vccnz L_carry_retry", "L_carry_ok:"]
        blk = Emit()
        blk("L_carry_retry:\ns_mov_b32 s%d, %d\nL_carry_again:\ns_sleep 2" % (sA, self.o["spin"]))
        blk("\n".join(self.gather_loads()) + "\ns_waitcnt vmcnt(0)")
        blk("\n".join(self.gather_count()))
        blk("s_nop 4\ns_cbranch_vccz L_carry_ok\ns_sub_u32 s%d, s%d, 1\ns_cmp_lg_u32 s%d, 0\ns_cbranch_scc1 L_carry_again\ns_branch L_carry_ok" % (sA, sA, sA))
        self.tail_blocks.append(blk.text())
        q = vGather + 28
        for u in range(6, -1, -1):
            d = vGather + 4 * u
            t += ["v_fmac_f32 v%d, v%d, v%d" % (d, cA64, q), "v_fmac_f32 v%d, v%d, v%d" % (d + 1, cA64, q + 1),
                  "v_fma_f32 v%d, -v%d, v%d, v%d" % (d, cA64 + 1, q + 1, d), "v_fmac_f32 v%d, v%d, v%d" % (d + 1, cA64 + 1, q)]
            q = d
        own, oth = tmp, tmp + 1
        t += ["v_mul_f32 v%d, v%d, v%d" % (oth, cQ + 1, q), "v_mul_f32 v%d, v%d, v%d" % (own, cQ, q),
              "v_fma_f32 v%d, -v%d, v%d, v%d" % (oth, cQ, q + 1, oth), "v_fmac_f32 v%d, v%d, v%d" % (own, cQ + 1, q + 1),
              "v_xor_b32 v%d, 16, v%d" % (tmp + 4, wH), "v_fmac_f32_dpp v%d, v%d, v%d %s" % (own, oth, cNs, QP),
              "v_mov_b32 v%d, v%d" % (oth, own), "v_xor_b32 v%d, 64, v%d" % (tmp + 5, wH), "v_xor_b32 v%d, 0x50, v%d" % (tmp + 6, wH),
              "v_permlane32_swap_b32 v%d, v%d" % (own, oth), "v_add_f32 v%d, v%d, v%d" % (own, own, oth)]
        a, b = self.lmad(accS, cM0, own), self.lmad(accS + 16, cM1, own)
        t += [a[0], b[0], a[1], b[1]]
        for j in range(1, 16):
            a, b = self.lmad(accS + j, cS1, accS + j - 1), self.lmad(accS + 16 + j, cS1, accS + 16 + j - 1)
            t += [a[0], b[0], a[1], b[1]]
        adr = {(0, 0): wH, (0, 1): tmp + 4, (1, 0): tmp + 5, (1, 1): tmp + 6}
        for mh in range(2):
            for z in range(2):
                b = accS + 16 * mh + 8 * z
                t += ["v_cvt_pk_bf16_f32 v%d, v%d, v%d" % (b + x, b + 2 * x, b + 2 * x + 1) for x in range(4)]
                t += ["ds_write_b128 v%d, %s" % (adr[mh, z], R("v", b, 4))]
        return t

    def task_send(self, pair):
        t = []
        for c in range(4):
            b = accR[pair] + 8 * c
            t += ["v_cvt_pk_bf16_f32 v%d, v%d, v%d" % (b + x, b + 2 * x, b + 2 * x + 1) for x in range(4)]
            t += [("buffer_store_dwordx4 %s, v%d, %s, s%d offen offset:%d %s" % (R("v", b, 4), vLane16, R("s", sIn, 4), sSend + pair, 1024 * c, self.o["send"]), "send%d" % pair)]
        return t

    def prologue(self):
        e = self.e
        e.where = "prologue"
        e("""
        s_cmp_ge_u32 s2, 256
        s_cbranch_scc1 L_end
        s_load_dwordx16 s[4:19], s[0:1], 0
        s_load_dwordx16 s[20:35], s[0:1], 64
        v_lshrrev_b32 v8, 6, v0
        v_and_b32 v9, 63, v0
        s_lshr_b32 s%d, s2, 3
        v_readfirstlane_b32 s%d, v8
        s_and_b32 s%d, s2, 7
        s_cmp_lt_u32 s%d, 4
        s_cbranch_scc1 L_helper
        s_sub_u32 s%d, s%d, 4
        s_mul_i32 s%d, s%d, 37
        s_lshr_b32 s%d, s%d, 8
        s_mul_i32 s%d, s%d, 7
        s_sub_u32 s%d, s%d, s%d
        s_lshl_b32 s%d, s%d, 2
        s_add_u32 s%d, s%d, s%d
        """ % (sA, sW, sB, sA, sA, sA, sC, sA, sC, sC, sD, sC, sG, sA, sD, sM, sB, sM, sM, sC))
        if self.o["stamps"]:
            e("s_mov_b32 s%d, s2\nv_mov_b32 v7, 0" % sT2)
        rho, gam = 10, 11
        e("""
        v_lshrrev_b32 v%d, 3, v9
        v_and_b32 v%d, 7, v9
        s_lshl_b32 s%d, s%d, 2
        s_add_u32 s%d, s%d, s%d
        s_mul_i32 s%d, s%d, %d
        v_mul_u32_u24 v%d, 896, v%d
        v_lshl_add_u32 v%d, v%d, 4, v%d
        v_add_u32 v%d, s%d, v%d
        v_add_u32 v%d, 7168, v%d
        s_lshl_b32 s%d, s%d, 7
        """ % (rho, gam, sA, sM, sA, sA, sW, sA, sA, 16 * 896, vX, rho, vX, gam, vX, vX, sA, vX, vX + 1, vX, sRot, sG))
        for j in range(1, 7):
            e("s_add_u32 s%d, s%d, 128\ns_cmp_eq_u32 s%d, 896\ns_cselect_b32 s%d, 0, s%d" % (sRot + j, sRot + j - 1, sRot + j, sRot + j, sRot + j))
        self.stamp()
        e("s_waitcnt lgkmcnt(0)")
        e("s_load_dwordx2 %s, %s, 0" % (R("s", sTag, 2), R("s", pWs, 2)))
        self.srd(sX, pX, 2048 * 896)
        xl = lambda a, j: e("buffer_load_dwordx4 %s, v%d, %s, s%d offen" % (R("v", vXP + 28 * a + 4 * j, 4), vX + a, R("s", sX, 4), sRot + j))
        xl(0, 0)
        xl(1, 0)
        e("""
        v_and_b32 v%d, 31, v9
        v_lshrrev_b32 v%d, 5, v9
        s_lshl_b32 s%d, s%d, 2
        s_add_u32 s%d, s%d, s%d
        s_lshl_b32 s%d, s%d, 5
        v_and_b32 v12, 30, v9
        v_add_u32 v12, s%d, v12
        s_lshl_b32 s%d, s%d, 9
        s_lshl_b32 s%d, s%d, 6
        s_add_u32 s%d, s%d, s%d
        v_lshl_add_u32 v13, v%d, 1, s%d
        v_lshl_add_u32 v8, v%d, 4, s%d
        """ % (vN, vH, sA, sG, sA, sA, sW, sB, sA, sB, sC, sG, sD, sW, sC, sC, sD, vN, sC, gam, sRot))
        P0 = 168
        e("global_load_ushort v%d, v12, %s" % (P0, R("s", pLre, 2)))
        e("global_load_ushort v%d, v12, %s" % (P0 + 1, R("s", pLim, 2)))
        e("global_load_ushort v%d, v12, %s" % (P0 + 2, R("s", pDt, 2)))
        e("global_load_ushort v%d, v13, %s" % (P0 + 4, R("s", pB1, 2)))
        e("global_load_ushort v%d, v13, %s offset:256" % (P0 + 8, R("s", pB1, 2)))
        e("global_load_dwordx4 %s, v8, %s" % (R("v", P0 + 16, 4), R("s", pDs, 2)))
        for a in range(2):
            for j in range(1, 7):
                xl(a, j)
        for s, p, size in ((sBre, pBre, 448 * 896), (sBim, pBim, 448 * 896), (sCre, pCre, 448 * 896), (sCim, pCim, 448 * 896),
                           (sW1, pW1, 448 * 3584), (sW2, pW2, 1792 * 896)):
            self.srd(s, p, size, 4096)
        e("s_cmp_ge_u32 s%d, 2\ns_cselect_b32 s%d, s%d, s%d\ns_cselect_b32 s%d, s%d, s%d" % (sW, sCown, sCim, sCre, sCown + 1, sCim + 1, sCre + 1))
        e("s_mov_b32 s%d, %d\ns_mov_b32 s%d, 0x20000" % (sCown + 2, 448 * 896 + 4096, sCown + 3))
        for i in range(3):
            e("s_cselect_b32 s%d, s%d, s%d" % (sSl + i, sRot + 2 + 2 * i, sRot + 1 + 2 * i))
        self.srd(sOut, pOut, 2048 * 1792)
        self.srd(sIn, pWs, WS_SIZE)
        e("""
        s_lshl_b32 s%d, s%d, 13
        s_add_u32 s%d, s%d, %d
        s_add_u32 s%d, s%d, s%d
        s_addc_u32 s%d, s%d, 0
        s_and_b32 s%d, s%d, 0xffff
        s_mov_b32 s%d, 8192
        s_mov_b32 s%d, 0x20000
        s_lshl_b32 s%d, s%d, 12
        s_add_u32 s%d, s%d, %d
        """ % (sB, sA, sB, sB, WS_E, sE, pWs, sB, sE + 1, pWs + 1, sE + 1, sE + 1, sE + 2, sE + 3, sD, sW, sM0, sD, RING))
        e("""
        s_mul_i32 s%d, s%d, %d
        s_add_u32 s%d, s%d, 4096
        v_mul_u32_u24 v12, 896, v%d
        v_lshrrev_b32 v13, 1, v%d
        v_xor_b32 v13, v13, v%d
        v_lshlrev_b32 v13, 4, v13
        """ % (sB, sA, 16 * 896, sB, sB, rho, rho, gam))
        for i in range(4):
            e("v_xor_b32 v8, %d, v13\nv_add3_u32 v%d, v8, v12, s%d" % (64 * (i % 2) + 16 * (i // 2), vB + i, sB))
            if i:
                e("v_add_u32 v%d, %d, v%d" % (vB + i, 7168 * (i % 2) - 1024 * i, vB + i))
        first = min(5, self.o.get("prefill0", 2))
        for s in range(first):
            for it in self.dma_items(s):
                self.put(it)
        e("""
        s_and_b32 s%d, s%d, 1
        s_lshr_b32 s%d, s%d, 1
        s_mul_i32 s%d, s%d, %d
        s_add_u32 s%d, s%d, 4096
        s_add_u32 s%d, s%d, s%d
        """ % (sA, sW, sC, sW, sB, sA, 32 * 896, sB, sB, sT, sB, sRot))
        for i in range(4):
            e("v_xor_b32 v8, %d, v13\nv_add3_u32 v%d, v8, v12, s%d" % (64 * (i % 2), vC + i, sT))
            if i:
                e("v_add_u32 v%d, %d, v%d" % (vC + i, (7168 - 1024) * i, vC + i))
        e("""
        v_and_b32 v13, 2, v%d
        v_lshlrev_b32 v13, 1, v13
        v_xor_b32 v13, v13, v%d
        v_lshlrev_b32 v13, 4, v13
        s_mul_i32 s%d, s%d, %d
        s_add_u32 s%d, s%d, s%d
        v_add3_u32 v%d, v13, v12, s%d
        s_mul_i32 s%d, s%d, %d
        s_lshl_b32 s%d, s%d, 7
        s_add_u32 s%d, s%d, s%d
        s_lshl_b32 s%d, s%d, 9
        s_add_u32 s%d, s%d, s%d
        s_add_u32 s%d, s%d, 4096
        v_lshlrev_b32 v12, 2, v12
        v_add3_u32 v%d, v13, v12, s%d
        """ % (rho, gam, sT, sG, 256 * 896, sT, sT, sB, vW2, sT, sT, sA, 32 * 3584, sB, sC, sT, sT, sB, sB, sG, sT, sT, sB, sT, sT, vW1, sT))
        for i in range(1, 4):
            e("v_add_u32 v%d, %d, v%d\nv_add_u32 v%d, %d, v%d" % (vW2 + i, (7168 - 1024) * i, vW2, vW1 + i, (8 * 3584 - 1024) * i, vW1))
        e("""
        v_lshlrev_b32 v%d, 4, v9
        v_bfe_u32 v12, v9, 1, 3
        v_xor_b32 v12, v12, v%d
        v_lshlrev_b32 v12, 4, v12
        v_lshl_add_u32 v%d, v%d, 7, v12
        """ % (vLane16, vH, rX, vN))
        for q in range(1, 4):
            e("v_xor_b32 v%d, %d, v%d" % (rX + q, 32 * q, rX))
        for q in range(4):
            e("v_add_u32 v%d, s%d, v%d\nv_add_u32 v%d, %d, v%d" % (rC + q, sM0, rX + q, rC + 4 + q, 3 * SLOT, rC + q))
        e("""
        v_and_b32 v12, 1, v9
        v_bfe_u32 v13, v9, 1, 4
        v_bfe_u32 v8, v9, 2, 3
        v_xor_b32 v8, v8, v12
        v_xor_b32 v8, v8, v%d
        v_lshlrev_b32 v8, 4, v8
        v_lshl_add_u32 v8, v13, 7, v8
        v_lshl_add_u32 v8, v12, 11, v8
        v_add_u32 v%d, s%d, v8
        """ % (vH, rB, sM0))
        for q in range(1, 4):
            e("v_xor_b32 v%d, %d, v%d" % (rB + q, 32 * q, rB))
        for q in range(4):
            e("v_add_u32 v%d, %d, v%d" % (rB + 4 + q, 3 * SLOT, rB + q))
        e("""
        v_lshlrev_b32 v8, 31, v12
        v_xor_b32 v%d, 1.0, v8
        v_lshl_add_u32 v8, v%d, 1, v12
        s_sub_u32 s%d, 32, s%d
        v_lshl_add_u32 v%d, v8, 3, s%d
        v_lshlrev_b32 v%d, 8, v%d
        v_lshl_add_u32 v%d, v13, 4, v%d
        v_cmp_eq_u32 vcc, 0, v8
        v_lshlrev_b32 v8, 3, v8
        v_sub_u32 v8, s%d, v8
        v_add_u32 v%d, -256, v%d
        v_med3_i32 v%d, v8, 0, 8
        v_mov_b32 v8, 0x7ffffff0
        v_cndmask_b32 v%d, v8, v%d, vcc
        """ % (cNs, vH, sB, sM, vEld, sB, vEld, vEld, vEld, vEld, sM, vEst, vEld, cCnt, vEst, vEst))
        e("""
        v_and_b32 v8, 7, v9
        v_lshlrev_b32 v15, 1, v%d
        v_xor_b32 v8, v8, v15
        v_lshlrev_b32 v8, 4, v8
        v_lshl_add_u32 v8, v13, 7, v8
        v_lshl_add_u32 v8, v12, 13, v8
        s_lshl_b32 s%d, s%d, 11
        s_add_u32 s%d, s%d, %d
        v_add_u32 v%d, s%d, v8
        v_add_u32 v%d, s%d, v%d
        s_lshl_b32 s%d, s%d, 10
        v_add_u32 v%d, s%d, v%d
        """ % (vH, sB, sW, sB, sB, HT, wH, sB, wAct, sD, vLane16, sB, sC, rActO, sB, vLane16))
        e("""
        v_bfe_u32 v12, v9, 2, 2
        v_bfe_u32 v13, v9, 3, 1
        v_xor_b32 v8, s%d, v13
        v_lshlrev_b32 v8, 6, v8
        v_lshl_add_u32 v8, v12, 7, v8
        v_bfe_u32 v15, v9, 4, 1
        v_lshl_add_u32 v8, v15, 5, v8
        v_and_b32 v15, 3, v9
        v_lshl_add_u32 v8, v15, 3, v8
        s_lshl_b32 s%d, s%d, 13
        s_add_u32 s%d, s%d, %d
        v_add_u32 v8, s%d, v8
        v_lshl_add_u32 v%d, v%d, 10, v8
        v_lshl_add_u32 v%d, v%d, 9, v8
        v_add_u32 v%d, %d, v%d
        v_add_u32 v%d, %d, v%d
        """ % (sA, sB, sC, sB, sB, RING, sB, rW1, vH, rW2, vH, rW1 + 1, 3 * SLOT, rW1, rW2 + 1, 3 * SLOT, rW2))
        e("""
        v_lshlrev_b32 v8, 6, v13
        v_lshl_add_u32 v8, v12, 7, v8
        v_lshl_add_u32 v8, v%d, 10, v8
        v_xor_b32 v15, v9, v12
        v_and_b32 v15, 1, v15
        v_lshl_add_u32 v8, v15, 5, v8
        v_and_b32 v15, 16, v9
        v_add_u32 v8, v8, v15
        v_and_b32 v15, 2, v9
        v_lshl_add_u32 v8, v15, 2, v8
        v_add_u32 v%d, %d, v8
        v_xor_b32 v%d, 64, v%d
        v_xor_b32 v%d, 16, v%d
        v_xor_b32 v%d, 0x50, v%d
        """ % (vH, rH, HT, rH + 1, rH, rH + 2, rH, rH + 3, rH))
        e("""
        v_lshrrev_b32 v8, 2, v%d
        v_and_b32 v12, 3, v%d
        v_lshl_add_u32 v12, v8, 3, v12
        s_lshl_b32 s%d, s%d, 2
        v_add_u32 v12, s%d, v12
        v_bfe_u32 v8, v12, 1, 3
        v_xor_b32 v8, v8, v%d
        v_lshlrev_b32 v8, 4, v8
        v_lshl_add_u32 v12, v12, 7, v8
        s_lshl_b32 s%d, s%d, 12
        v_add_u32 v12, s%d, v12
        s_add_u32 s%d, s%d, %d
        v_lshl_add_u32 v13, v9, 5, s%d
        s_lshl_b32 s%d, s%d, 13
        s_lshl_b32 s%d, s%d, 7
        s_add_u32 s%d, s%d, s%d
        s_add_u32 s%d, s%d, %d
        v_lshl_add_u32 v15, v%d, 2, s%d
        v_lshl_add_u32 v15, v%d, 12, v15
        """ % (rho, rho, sB, sA, sB, gam, sB, sC, sB, sB, sD, RES, sB, sB, sC, sT, sA, sB, sB, sT, sB, sB, RES, vN, sB, vH))
        e("""
        s_lshl_b32 s%d, s%d, 1
        s_add_u32 s%d, s%d, s%d
        s_mul_i32 s%d, s%d, %d
        s_add_u32 s%d, s%d, s%d
        s_lshl_b32 s%d, s%d, 8
        s_add_u32 s%d, s%d, s%d
        v_lshl_add_u32 v%d, v%d, 2, s%d
        v_mul_u32_u24 v8, %d, v%d
        v_add_u32 v%d, v%d, v8
        """ % (sB, sM, sB, sB, sC, sB, sB, 32 * 1792, sB, sB, sT, sT, sG, sB, sB, sT, vOut, vN, sB, 16 * 1792, vH, vOut, vOut))
        e("""
        s_mul_i32 s%d, s%d, %d
        s_add_u32 s%d, s%d, s%d
        s_mul_i32 s%d, s%d, 448
        s_mul_i32 s%d, s%d, %d
        s_add_u32 s%d, s%d, %d
        """ % (sOwnW, sC, 64 * 896, sOwnW, sOwnW, sRot, sOwnC, sRot, sB, sM, 7 * 49152, sB, sB, WS_IN))
        for i in range(3):
            e("s_mul_i32 s%d, s%d, 384\ns_add_u32 s%d, s%d, s%d\ns_add_u32 s%d, s%d, s%d\ns_add_u32 s%d, s%d, %d"
              % (sSend + i, sSl + i, sSend + i, sSend + i, sB, sSend + i, sSend + i, sD, sSend + i, sSend + i, 16384 * i))
        e("""
        s_mul_i32 s%d, s%d, 384
        s_add_u32 s%d, s%d, s%d
        s_lshl_b32 s%d, s%d, 12
        s_add_u32 s%d, s%d, s%d
        s_lshl_b32 s%d, s%d, 11
        s_add_u32 s%d, s%d, s%d
        s_mul_i32 s%d, s%d, %d
        s_lshl_b32 s%d, s%d, 7
        s_add_u32 s%d, s%d, s%d
        s_add_u32 s%d, s%d, %d
        """ % (sRecv, sRot, sRecv, sRecv, sB, sT, sA, sRecv, sRecv, sT, sT, sC, sRecv, sRecv, sT, sB, sM, 7 * 256, sT, sA, sB, sB, sT, sB, sB, WS_FLAG))
        for i in range(3):
            e("s_lshl_b32 s%d, s%d, 1\ns_add_u32 s%d, s%d, s%d\ns_lshl_b32 s%d, s%d, 4\ns_add_u32 s%d, s%d, s%d\ns_add_u32 s%d, s%d, %d"
              % (sFlagOut + i, sSl + i, sFlagOut + i, sFlagOut + i, sB, sT, sC, sFlagOut + i, sFlagOut + i, sT, sFlagOut + i, sFlagOut + i, 32 * i))
        e("s_lshl_b32 s%d, s%d, 1\ns_add_u32 s%d, s%d, s%d\nv_add_u32 v%d, s%d, v%d" % (sT, sRot, sB, sB, sT, vFlag, sB, vLane16))
        for i in range(8):
            e("s_mov_b32 s%d, %d" % (sRowOff + i, 2 * i * 1792))
        e("s_mov_b32 s%d, 0x3f80\ns_mov_b32 s%d, 0x3f800000\ns_mov_b32 s%d, 0x%x\ns_mov_b32 s%d, 0x%x\ns_mov_b32 s%d, 0x3f803f80"
          % (sSelLo, sSelHi, sLn2, f32(LN2), sLn2 + 1, f32(LN2), sSelHi + 1))
        e("s_add_u32 s%d, s%d, 2\ns_addc_u32 s%d, s%d, 0\ns_or_b32 s%d, s%d, 1" % (sTag, sTag, sTag + 1, sTag + 1, sTag, sTag))
        c0 = bf16_rne(LOG2E)
        c1 = bf16_rne(LOG2E - bf16_val(c0))
        c2 = bf16_rne(LOG2E - bf16_val(c0) - bf16_val(c1))
        e("""
        v_cmp_eq_u32 vcc, 0, v%d
        v_mov_b32 v8, 0x%x
        v_mov_b32 v%d, 0x%x
        v_cndmask_b32 v%d, 0, v8, vcc
        v_cndmask_b32 v%d, 0, v%d, vcc
        """ % (vH, c0 | (c1 << 16), P0 + 13, c2, P0 + 12, P0 + 13, P0 + 13))
        for r in (P0 + 6, P0 + 7, P0 + 10, P0 + 11, P0 + 14, P0 + 15):
            e("v_mov_b32 v%d, 0" % r)
        self.stamp()
        for b in (P0 + 4, P0 + 8):
            e("v_mov_b32 v%d, v%d\nv_lshl_or_b32 v%d, v%d, 16, v%d" % (b + 1, b, b, b, b))
        e("v_mfma_f32_32x32x16_bf16 %s, %s, %s, 0" % (R("v", accA, 16), R("v", P0 + 4, 4), R("v", P0 + 12, 4)))
        e("v_mfma_f32_32x32x16_bf16 %s, %s, %s, 0" % (R("v", accB, 16), R("v", P0 + 8, 4), R("v", P0 + 12, 4)))
        DS = 152
        for x in range(4):
            e("v_lshlrev_b32 v%d, 16, v%d\nv_and_b32 v%d, 0xffff0000, v%d" % (DS + 2 * x, P0 + 16 + x, DS + 2 * x + 1, P0 + 16 + x))
        for x in range(4):
            e("v_pk_mul_f32 %s, %s, %s" % (R("v", DS + 2 * x, 2), R("v", DS + 2 * x, 2), R("s", sLn2, 2)))
        U = list(range(16, 48)) + list(range(64, 80)) + list(range(160, 168))
        sm, sq, t0, t1 = 8, 9, 10, 11
        late = [it for s in range(first, 5) for it in self.dma_items(s)]
        for a in range(2):
            for j in range(7):
                p = vXP + 28 * a + 4 * j
                for x in range(4):
                    c = "0" if j == 0 and x == 0 else None
                    e("v_dot2_f32_bf16 v%d, v%d, s%d, %s" % (sm, p + x, sSelHi + 1, c or "v%d" % sm))
                    e("v_dot2_f32_bf16 v%d, v%d, v%d, %s" % (sq, p + x, p + x, c or "v%d" % sq))
                for x in range(4):
                    e("v_lshlrev_b32 v%d, 16, v%d\nv_and_b32 v%d, 0xffff0000, v%d" % (U[8 * j + 2 * x], p + x, U[8 * j + 2 * x + 1], p + x))
            if a == 1:
                self.stamp()
            for m in ("quad_perm:[1,0,3,2]", "quad_perm:[2,3,0,1]", "row_half_mirror"):
                e("v_add_f32_dpp v%d, v%d, v%d %s row_mask:0xf bank_mask:0xf bound_ctrl:0" % (sm, sm, sm, m))
                e("v_add_f32_dpp v%d, v%d, v%d %s row_mask:0xf bank_mask:0xf bound_ctrl:0" % (sq, sq, sq, m))
            e("""
            v_mul_f32 v%d, 0x%x, v%d
            v_mul_f32 v%d, 0x%x, v%d
            v_fma_f32 v%d, -v%d, v%d, v%d
            v_max_f32 v%d, 0, v%d
            v_cvt_pk_bf16_f32 v%d, v%d, v%d
            v_and_b32 v%d, 0xffff0000, v%d
            v_lshlrev_b32 v%d, 16, v%d
            v_add_f32 v%d, 0x%x, v%d
            v_cvt_pk_bf16_f32 v%d, v%d, v%d
            v_lshlrev_b32 v%d, 16, v%d
            v_sqrt_f32 v%d, v%d
            v_cvt_pk_bf16_f32 v%d, v%d, v%d
            v_lshlrev_b32 v%d, 16, v%d
            v_rcp_f32 v%d, v%d
            v_mul_f32 v%d, 0x%x, v%d
            v_mul_f32 v%d, -v%d, v%d
            """ % (sm, f32(1 / 448), sm, sq, f32(1 / 448), sq, sq, sm, sm, sq, sq, sq, sm, sm, sq, sq, sm, sm, sm, sq, f32(1e-5), sq,
                   sq, sq, sq, sq, sq, sq, sq, sq, sq, sq, sq, sq, sq, sq, t0, f32(LOG2E), sq, t1, sm, t0))
            for j in range(7):
                p = vXP + 28 * a + 4 * j
                if j == 0:
                    n = [P0 + 4 + 2 * x for x in range(4)]
                else:
                    n = [U[8 * j + 2 * x] for x in range(4)]
                for x in range(4):
                    e("v_pk_fma_f32 %s, %s, %s, %s op_sel:[0,0,1] op_sel_hi:[1,0,1]" % (R("v", n[x], 2), R("v", U[8 * j + 2 * x], 2), R("v", t0, 2), R("v", t0, 2)))
                for x in range(4):
                    e("v_cvt_pk_bf16_f32 v%d, v%d, v%d" % (p + x, n[x], n[x] + 1))
                e("ds_write_b128 v12, %s offset:%d" % (R("v", p, 4), XN + j * 8192 + a * 2048))
                if late and (a == 1 or j >= 2):
                    self.put(late.pop(0))
                if j == 0:
                    for x in range(4):
                        e("v_pk_fma_f32 %s, %s, %s, %s" % (R("v", U[2 * x], 2), R("v", n[x], 2), R("v", DS + 2 * x, 2), R("v", U[2 * x], 2)))
                    for z in range(2):
                        e("ds_write_b128 v13, %s offset:%d" % (R("v", U[4 * z], 4), a * 2048 + 16 * z))
        for it in late:
            self.put(it)
        e("v_mov_b32 v112, v%d\nv_mov_b32 v113, v%d\nv_mov_b32 v114, v%d" % (P0, P0 + 1, P0 + 2))
        e.wait(vm=e.vm_after("dma0"), lgkm=0)
        e("s_barrier")
        self.stamp()
        for it in self.read_items(0):
            self.put(it)
        e.wait(vm=e.vm_after("dma1"))

    def put(self, it):
        for x in it if isinstance(it, list) else [it]:
            if isinstance(x, tuple):
                self.e(x[0], tag=x[1])
            else:
                self.e(x)

    def main(self):
        e = self.e
        NG = 42 * 8
        fixed = [[] for _ in range(NG)]
        txt = lambda x: x[0] if isinstance(x, tuple) else x
        icost = lambda it: sum(cost(txt(x)) for x in (it if isinstance(it, list) else [it]))
        dist = self.o["dist"]
        sched, nxt = {}, 5
        for s in range(1, 42):
            sched[s] = []
            while nxt < 42 and nxt <= s + dist and len(sched[s]) < 2:
                sched[s].append(nxt)
                nxt += 1
        for s in range(42):
            rd = self.read_items(s + 1) if s < 41 else []
            if s == 0:
                rd += [["ds_read2st64_b32 %s, v15 offset0:%d offset1:%d" % (R("v", vRes + x, 2), x, x + 1)] for x in range(0, 16, 2)]
            dm = [it for t in sched.get(s, []) for it in self.dma_items(t)]
            load = [0.0] * 8
            load[7] = 2.0
            nr = 5 if len(rd) <= 4 else 6
            for i, it in enumerate(rd):
                g = i * nr // len(rd) if len(rd) > 4 else (0, 1, 3, 4)[i]
                fixed[8 * s + g].append(it)
                load[g] += icost(it)
            g = 0
            for i, it in enumerate(dm):
                left = len(dm) - i
                cand = range(g, max(g + 1, 8 - (left - 1 if len(dm) <= 4 else left - 1)))
                g = min(cand, key=lambda x: (round(load[x], 1), x))
                fixed[8 * s + g].append(it)
                load[g] += icost(it)
                g = min(g + 1, 7)
        fixed[8 * 37 + 6].append(["s_lshl_b32 s%d, s%d, 12" % (sA, sW), "s_and_b32 s%d, s%d, 0x2000" % (sA, sA), "v_subrev_u32 v%d, s%d, v%d" % (rW2 + 1, sA, rW2 + 1)])
        fixed[8 * 38 + 6].append(["v_subrev_u32 v%d, s%d, v%d" % (rC + 4 + q, sA, rC + 4 + q) for q in range(4)] +
                                 ["s_lshr_b32 s%d, s%d, 7" % (sB, sA), "v_xor_b32 v%d, s%d, v%d" % (rH, sB, rH), "v_xor_b32 v%d, s%d, v%d" % (rH + 2, sB, rH + 2)])
        base = [sum(icost(it) for it in fixed[g]) + (2.0 if g % 8 == 7 else 0) for g in range(NG)]
        tasks = [(self.task_params(), 0, 8 * 7), (self.task_scan1(), 8 * 7 + 2, 8 * 14), (self.task_mish(0), 8 * 14 + 1, 8 * 20 - 2),
                 (self.task_mish(1), 8 * 21 + 1, 8 * 26 - 2), (self.gather_loads(), 8 * 26, 8 * 27), (self.task_carry(), 8 * 28, 8 * 32 - 2),
                 (self.task_send(0), 8 * 35 + 1, 8 * 37), (self.task_send(1), 8 * 37 + 1, 8 * 39), (self.task_send(2), 8 * 39 + 1, 8 * 40)]
        flow = [[] for _ in range(NG)]
        for t, g0, g1 in tasks:
            total = sum(cost(txt(x)) for x in t if not txt(x).endswith(":"))
            lo, hi = 0.0, 1000.0
            for _ in range(40):
                mid = (lo + hi) / 2
                if sum(max(0.0, mid - base[g]) for g in range(g0, g1)) < total:
                    lo = mid
                else:
                    hi = mid
            t = list(t)
            credit = 0.0
            for g in range(g0, g1):
                credit += max(0.0, hi - base[g])
                had_valu = False
                while t and (credit >= 0.5 * cost(txt(t[0])) or g == g1 - 1):
                    x = t[0]
                    if is_mem(txt(x)) and had_valu and g != g1 - 1:
                        break
                    t.pop(0)
                    flow[g].append(x)
                    if not txt(x).endswith(":"):
                        credit -= cost(txt(x))
                        base[g] += cost(txt(x))
                    had_valu |= txt(x).startswith("v_")
            assert not t
        self.gapload = base
        for s in range(42):
            e.comment("stage %d %s" % (s, self.stage_kind(s)))
            for k, mf in enumerate(self.mfmas(s)):
                g = 8 * s + k
                e.where = "s%d.g%d" % (s, k)
                e(mf)
                if k == 7 and s < 41:
                    e.wait(vm=e.vm_after("dma%d" % (s + 2)), lgkm=0)
                    if s == 0 or s >= 5:
                        e("s_barrier")
                lead = []
                while flow[g] and is_mem(txt(flow[g][0])):
                    lead.append(flow[g].pop(0))
                mem = [it for it in fixed[g] if not txt(it[-1]).startswith("v_")]
                for it in mem + lead + [it for it in fixed[g] if it not in mem] + flow[g]:
                    self.put(it)
            if s in (6, 13, 20, 26, 32, 38, 41):
                self.stamp()

    def tail(self):
        e = self.e
        e.where = "tail"
        o = self.o
        e("v_mov_b32 v%d, s%d\nv_mov_b32 v%d, s%d" % (tmp, sTag, tmp + 1, sTag + 1))
        e("v_mov_b32 v%d, 0\ns_mov_b64 exec, 1" % (tmp + 2))
        e.wait(vm=0)
        for i in range(3):
            e("buffer_store_dwordx2 %s, v%d, %s, s%d offen %s" % (R("v", tmp, 2), tmp + 2, R("s", sIn, 4), sFlagOut + i, o["send"]))
        self.stamp()
        e("s_mov_b64 exec, 63\ns_mov_b32 s%d, %d" % (sA, o["spin"]))
        e("L_poll:")
        e("buffer_load_dwordx2 %s, v%d, %s, 0 offen sc1" % (R("v", tmp + 4, 2), vFlag, R("s", sIn, 4)))
        e("s_sub_u32 s%d, s%d, 1\ns_cmp_eq_u32 s%d, 0\ns_cbranch_scc1 L_polled" % (sA, sA, sA))
        e("s_waitcnt vmcnt(0)\nv_cmp_ne_u64 vcc, %s, %s\ns_nop 4\ns_cbranch_vccnz L_poll" % (R("s", sTag, 2), R("v", tmp + 4, 2)))
        e("L_polled:\ns_waitcnt vmcnt(0)\ns_mov_b64 exec, -1")
        self.stamp()
        buf = [accS + 8 * p for p in range(6)]
        for p in range(6):
            for z in range(2):
                e("buffer_load_dwordx4 %s, v%d, %s, s%d offen offset:%d sc1" % (R("v", buf[p] + 4 * z, 4), vLane16, R("s", sIn, 4), sRecv, 1024 * z))
            if p < 5:
                e("s_add_u32 s%d, s%d, 8192" % (sRecv, sRecv))
        for p in range(6):
            for x in range(16):
                e("v_dot2_f32_bf16 v%d, v%d, s%d, v%d" % (accO + x, buf[p] + x // 2, sSelHi if x % 2 else sSelLo, accO + x))
        for x in range(0, 16, 2):
            e("v_pk_fma_f32 %s, %s, %s, %s" % (R("v", accO + x, 2), R("v", accO + x, 2), R("s", sLn2, 2), R("v", vRes + x, 2)))
        for x in range(16):
            e("buffer_store_dword v%d, v%d, %s, s%d offen offset:%d %s" % (accO + x, vOut, R("s", sOut, 4), sRowOff + x // 2, 1792 * (x % 2), o["outf"]))
        e("""
        s_lshl_b32 s%d, s%d, 5
        s_add_u32 s%d, s%d, s%d
        s_lshl_b32 s%d, s%d, 8
        s_add_u32 s%d, s%d, s%d
        s_cmp_lg_u32 s%d, 31
        s_cbranch_scc1 L_noepoch
        s_mov_b64 exec, 1
        buffer_store_dwordx2 %s, v%d, %s, 0 offen sc1
        s_mov_b64 exec, -1
        L_noepoch:
        """ % (sA, sG, sA, sA, sM, sB, sW, sA, sA, sB, sA, R("v", tmp, 2), tmp + 2, R("s", sIn, 4)))
        if o["stamps"]:
            e.wait(vm=0)
            self.stamp()
            e("""
            s_lshl_b32 s%d, s%d, 2
            s_add_u32 s%d, s%d, s%d
            s_mul_i32 s%d, s%d, %d
            s_add_u32 s%d, s%d, %d
            s_add_u32 s34, s34, s%d
            s_addc_u32 s35, s35, 0
            v_lshrrev_b32 v8, 2, v%d
            s_mov_b64 exec, 0x%x
            global_store_dword v8, v7, s[34:35]
            """ % (sA, sT2, sA, sA, sW, sA, sA, 8 * o["stamps"], sA, sA, STAMP_OFF, sA, vLane16, (1 << (2 * o["stamps"])) - 1))
        e("L_end:\ns_endpgm")

    def helper(self):
        b = Emit()
        if not self.o["helpers"]:
            b("L_helper:\ns_endpgm")
            return b.text()
        b("""
        L_helper:
        s_getpc_b64 s[36:37]
        L_pc:
        s_sub_u32 s36, s36, L_pc-%s_kernel
        s_subb_u32 s37, s37, 0
        s_and_b32 s37, s37, 0xffff
        s_mov_b32 s38, L_last-%s_kernel
        s_mov_b32 s39, 0x20000
        v_lshlrev_b32 v1, 7, v0
        buffer_load_dword v2, v1, s[36:39], 0 offen
        s_lshl_b32 s%d, s2, 8
        v_add_u32 v3, s%d, v0
        s_waitcnt lgkmcnt(0)
        """ % (NAME, NAME, sC, sC))
        self_e, self.e = self.e, b
        for s, p, size in ((40, pBre, 448 * 896), (44, pBim, 448 * 896), (48, pCre, 448 * 896), (52, pCim, 448 * 896), (60, pW1, 448 * 3584), (64, pW2, 1792 * 896)):
            self.srd(s, p, size)
        self.e = self_e
        b("""
        v_lshrrev_b32 v4, 1, v3
        v_lshlrev_b32 v4, 7, v4
        v_and_b32 v5, 1, v3
        v_mov_b32 v8, 0x7ffffff0
        v_cmp_eq_u32 vcc, 0, v5
        v_cndmask_b32 v9, v8, v4, vcc
        v_cndmask_b32 v10, v4, v8, vcc
        buffer_load_dword v18, v9, s[40:43], 0 offen
        buffer_load_dword v11, v10, s[44:47], 0 offen
        v_lshlrev_b32 v4, 2, v4
        v_lshl_add_u32 v4, v5, 7, v4
        buffer_load_dword v12, v4, s[60:63], 0 offen
        buffer_load_dword v13, v4, s[60:63], 0 offen offset:256
        v_lshlrev_b32 v4, 7, v3
        s_mov_b32 s%d, 0x100000
        buffer_load_dword v14, v4, s[64:67], 0 offen
        buffer_load_dword v15, v4, s[64:67], s%d offen
        buffer_load_dword v16, v9, s[48:51], 0 offen
        buffer_load_dword v17, v10, s[52:55], 0 offen
        s_waitcnt vmcnt(0)
        s_endpgm
        """ % (sC, sC))
        return b.text()

    def build(self):
        self.prologue()
        self.main()
        self.tail()
        body = self.e.text() + "".join(self.tail_blocks) + self.helper() + "L_last:\n"
        return single(body, 256, 256, LDS_BYTES, vgpr=512, sgpr=102, accum=256, header=HEADER)


if __name__ == "__main__":
    out = sys.argv[1]
    opt = eval("dict(%s)" % (sys.argv[2] if len(sys.argv) > 2 else ""))
    g = Gen(**opt)
    open(out, "w").write(g.build())
    if opt.get("verbose"):
        print("\n".join(g.e.log))
        for s in range(42):
            print(s, " ".join("%4.1f" % x for x in g.gapload[8 * s:8 * s + 8]), " est %d" % sum(max(32, 9 + 4 * x) for x in g.gapload[8 * s:8 * s + 8]))
        print("total est", sum(max(32, 9 + 4 * x) for x in g.gapload))
    print("auto waits", g.e.auto_waits, "auto nops", g.e.auto_nops, "stamps", g.nstamp)
```

```python
import copy
import struct
import sys
from asmlib import NAME, STAMP_OFF, single
from emit import Emit
from align import align, sizes, is_ins

HEADER = open("header.txt").read()

XN, ACT, HT = 0, 0, 32768
RING, SLOT, NSLOT = 57344, 16384, 6
RES = RING + NSLOT * SLOT
LDS_BYTES = RES + 8192
WS_XCC, WS_FLAG, WS_E, WS_IN, WS_SIZE = 4096, 16384, 131072, 1 << 20, 16 << 20
OOB = 0x7FFFFFF0
pX, pLre, pLim, pBre, pBim, pCre, pCim, pDt, pDs, pW1, pB1, pW2, pOut, pWs = 4, 6, 8, 10, 12, 14, 16, 18, 20, 24, 26, 28, 30, 34
sX, sBre, sBim, sCre, sCim, sCown, sW1, sW2, sOut, sE, sIn = 36, 40, 44, 48, 52, 56, 60, 64, 68, 72, 76
sRot, sSl, sW, sG, sM, sM0, sT, sT2, sTag = 80, 87, 90, 91, 92, 93, 94, 95, 96
sA, sB, sC, sD = 98, 99, 100, 101
sOwnW, sOwnC, sSend, sRecv, sFlagOut, sRowOff, sSelLo, sSelHi, sOnes, sLn2, sSlow, sXcc = 4, 5, 6, 9, 10, 13, 21, 22, 23, 24, 26, 27
vLane16, vN, vH, vEld, vOut, vFlag = 1, 2, 3, 4, 5, 6
tmp = 8
accS, accA, accB, accR = 16, 48, 80, (112, 144, 48)
accO = 176
vB, vW1, vW2, vC = 192, 196, 200, 204
rX, rW1, vEst, vXst, vRec, rC = 208, 212, 214, 215, 216, 220
vXld, vOne, rW2, rH, rActO, wAct, wH = 228, 229, 230, 232, 236, 237, 238
cS1, cS2, cK1, cK2, cA16, cM0, cM1, cA64, cQ, cNs, cCnt, rRes = 239, 240, 241, 242, 243, 245, 247, 249, 251, 253, 254, 255
GQ = [212, 196, 208, 192, 188, 184, 180, 176]
vTagv, vPoll = 192, 194
vX, vXP = 14, 96
LOG2E, LN2 = 1.4426950408889634, 0.6931471805599453
SW = "row_ror:8 row_mask:0xf bank_mask:0xf"


def f32(x):
    return struct.unpack("<I", struct.pack("<f", x))[0]


def bf16_rne(x):
    u = f32(x)
    return ((u + 0x7FFF + ((u >> 16) & 1)) >> 16) & 0xFFFF


def bf16_val(h):
    return struct.unpack("<f", struct.pack("<I", h << 16))[0]


def R(k, b, n):
    return "%s[%d:%d]" % (k, b, b + n - 1)


def V(b, n):
    return R("v", b, n)


def S(b, n):
    return R("s", b, n)


def txt(x):
    return x[0] if isinstance(x, tuple) else x


def cost(x):
    t = txt(x)
    if callable(t) or t.endswith(":"):
        return 0
    op = t.split()[0]
    if op.startswith(("v_exp", "v_rcp", "v_sin", "v_cos", "v_sqrt", "v_rsq")):
        return 2.1
    if op.startswith("ds_write"):
        return 8
    if op.startswith(("buffer_", "global_")):
        return 3.4
    if op.startswith("s_"):
        return 0.7
    return 1.03


def icost(it):
    return sum(cost(x) for x in (it if isinstance(it, list) else [it]))


def is_mem(x):
    return not callable(txt(x)) and txt(x).split()[0].startswith(("ds_", "buffer_", "global_"))


def is_dsw(x):
    return not callable(txt(x)) and txt(x).startswith("ds_write")


class Gen:
    def __init__(self, **opt):
        self.o = dict(stamps=0, helpers=1, fast="", ldf="nt", plf="nt", outf="sc1", dist=6, spin=1 << 16, pre0=6, hops=1, force_slow=0,
                      xcc=0, mapping="m", g0=8 * 19, gstep=5, glat=18,
                      order="A00 A10 A20 A01 A11 A21 B00 B10 B20 B01 B11 B21 S00 S01 S10 S11 S20 S21")
        self.o.update(opt)
        self.order = self.o["order"].split()
        self.first = {k: 21 + min(i for i, x in enumerate(self.order) if x[0] + x[2] == k) for k in ("A0", "A1", "B0", "B1", "S0", "S1")}
        self.last = {k: 21 + max(i for i, x in enumerate(self.order) if x[0] + x[2] == k) for k in self.first}
        self.start = [21 + min(i for i, x in enumerate(self.order) if x[1] == str(p)) for p in range(3)]
        self.done = [21 + max(i for i, x in enumerate(self.order) if x[1] == str(p)) for p in range(3)]
        self.abuf = {k: 32 * i for i, k in enumerate(("A0", "A1", "B0", "B1", "S0", "S1"))}
        free = [192] + [self.abuf[k] for k in sorted(self.last, key=self.last.get)]
        self.obuf = [(free[0], free[1]), (free[2], free[3]), (free[0], free[1])]
        assert sorted(self.last.values())[0] < 38 and sorted(self.last.values())[2] < 39
        self.e = Emit()
        self.cold = []
        self.nstamp = 0

    def stamp(self):
        if self.o["stamps"]:
            k = self.nstamp
            self.e("%s s[2:3]\ns_waitcnt lgkmcnt(0)" % ("s_memtime" if self.o.get("cyc") else "s_memrealtime"))
            self.e(f"v_writelane_b32 v7, s2, {2 * k}\nv_writelane_b32 v7, s3, {2 * k + 1}")
            self.nstamp += 1

    def srd(self, s, p, size, shift=0):
        e = self.e
        if shift:
            e(f"s_sub_u32 s{s}, s{p}, {shift}\ns_subb_u32 s{s + 1}, s{p + 1}, 0\ns_and_b32 s{s + 1}, s{s + 1}, 0xffff")
        else:
            e(f"s_mov_b32 s{s}, s{p}\ns_and_b32 s{s + 1}, s{p + 1}, 0xffff")
        e(f"s_mov_b32 s{s + 2}, {size + shift}\ns_mov_b32 s{s + 3}, 0x20000")

    def put(self, it):
        for x in it if isinstance(it, list) else [it]:
            if callable(x):
                x()
            elif isinstance(x, tuple):
                self.e(x[0], tag=x[1])
            else:
                self.e(x)

    def kind(self, s):
        if s < 7:
            return ("B", s)
        if s < 21:
            return ("W1", (s - 7) // 7, (s - 7) % 7)
        if s < 39:
            x = self.order[s - 21]
            return ("C", int(x[1]), int(x[2])) if x[0] == "S" else ("W2", "AB".index(x[0]), int(x[1]), int(x[2]))
        if s < 41:
            return ("OW", s - 39)
        return ("OC",)

    def shared(self, s):
        return s < 42 and self.kind(s)[0] not in ("B", "C")

    def dma_items(self, s):
        k = self.kind(s)
        head = [f"s_add_u32 m0, s{sM0}, {(s % NSLOT) * SLOT + 4096}"]
        so = sT
        if k[0] == "B":
            so = sRot + k[1]
            srcs = [(vB + i, sBim if i % 2 else sBre) for i in range(4)]
        elif k[0] == "W1":
            head.append(f"s_mul_i32 s{sT}, s{sRot + k[2]}, 1792")
            if s == 14:
                head = [f"v_add_u32 v{vW1 + i}, 256, v{vW1 + i}" for i in range(4)] + head
            srcs = [(vW1 + i, sW1) for i in range(4)]
        elif k[0] == "W2":
            head.append(f"s_add_u32 s{sT}, s{sSl + k[2]}, {(128 * k[1] + 16 * k[3]) * 896}")
            srcs = [(vW2 + i, sW2) for i in range(4)]
        elif k[0] == "C":
            head.append(f"s_mul_i32 s{sT}, s{sSl + k[1]}, 448")
            srcs = [(vC + i, sCim if k[2] else sCre) for i in range(4)]
        elif k[0] == "OW":
            head.append(f"s_add_u32 s{sT}, s{sOwnW}, {128 * k[1] * 896}")
            srcs = [(vW2 + i, sW2) for i in range(4)]
        else:
            so = sOwnC
            srcs = [(vC + i, sCown) for i in range(4)]
        return [(head if i == 0 else []) + [(f"buffer_load_dwordx4 v{v}, {S(srd, 4)}, s{so} offen offset:{1024 * i} lds", f"dma{s}")]
                for i, (v, srd) in enumerate(srcs)]

    def read_items(self, s):
        k = self.kind(s)
        hi = (s % NSLOT) // 3
        so = ((s % NSLOT) % 3) * SLOT
        wb = 224 + 16 * (s % 2)
        oa, ow = self.obuf[s - 39] if s >= 39 else (0, 0)
        b128 = lambda a, v, off: [f"ds_read_b128 {R('a', a, 4)}, v{v} offset:{off}"]
        tr = lambda a, v, off, st, dv=0: [f"ds_read_b64_tr_b16 {R('a', a + 2 * x, 2)}, v{v + dv * x} offset:{off + st * x}" for x in range(2)]
        it = []
        if k[0] == "B":
            for q in range(4):
                it.append(b128(wb + 4 * q, rC + 4 * hi + q, so))
                it += [b128((s * 8 + q * 2 + mh) * 4, rX + q, s * 8192 + mh * 4096) for mh in range(2)]
        elif k[0] == "W1":
            it = [tr(wb + 4 * q, rW1 + hi, so + 2048 * q, 512) for q in range(4)]
        elif k[0] == "W2":
            for q in range(4):
                it.append(tr(wb + 4 * q, rW2 + hi, so + 2048 * q, 1024))
                kk = 4 * k[3] + q
                if s == self.first["AB"[k[1]] + str(k[3])]:
                    it += [b128(64 * k[1] + (kk * 2 + mh) * 4, vLane16, ACT + k[1] * 16384 + kk * 2048 + mh * 1024) for mh in range(2)]
        elif k[0] == "C":
            for q in range(4):
                it.append(b128(wb + 4 * q, rC + 4 * hi + q, so))
                if s == self.first["S" + str(k[2])]:
                    it += [tr(128 + ((4 * k[2] + q) * 2 + mh) * 4, rH + mh, 8192 * k[2] + 2048 * q, 512, 2) for mh in range(2)]
        elif k[0] == "OW":
            for kk in range(8):
                it.append(tr(ow + 4 * kk, rW2 + 1, so + 2048 * kk, 1024))
                it.append(b128(oa + 4 * kk, rActO, ACT + k[1] * 16384 + kk * 2048))
        else:
            for kk in range(8):
                it.append(b128(ow + 4 * kk, rC + 4 + kk % 4, so + 8192 * (kk // 4)))
                it.append(tr(oa + 4 * kk, rH, 8192 * (kk // 4) + 2048 * (kk % 4), 512, 2))
        return it

    def mfmas(self, s):
        k = self.kind(s)
        wb = 224 + 16 * (s % 2)
        M = lambda d, a, b, c: f"v_mfma_f32_32x32x16_bf16 {V(d, 16)}, {R('a', a, 4)}, {R('a', b, 4)}, {'0' if c is None else V(c, 16)}"
        out = []
        if k[0] == "B":
            for q in range(4):
                for mh in range(2):
                    d = accS + 16 * mh
                    out.append(M(d, (s * 8 + q * 2 + mh) * 4, wb + 4 * q, None if s == 0 and q == 0 else d))
        elif k[0] == "W1":
            acc = accB if k[1] else accA
            for q in range(4):
                for mh in (1, 0):
                    d = acc + 16 * mh
                    out.append(M(d, wb + 4 * q, (k[2] * 8 + q * 2 + mh) * 4, acc if k[2] == 0 and q == 0 else d))
        elif k[0] in ("W2", "C"):
            ab, pair, kh = (64 * k[1], k[2], k[3]) if k[0] == "W2" else (128, k[1], k[2])
            for q in range(4):
                for mh in range(2):
                    d = accR[pair] + 16 * mh
                    out.append(M(d, ab + ((4 * kh + q) * 2 + mh) * 4, wb + 4 * q, None if s == self.start[pair] and q == 0 else d))
        else:
            oa, ow = self.obuf[s - 39]
            out = [M(accO, oa + 4 * kk, ow + 4 * kk, accO) for kk in range(8)]
        return out

    def cmul(self, d, a, b):
        return [f"v_mul_f32 v{d}, v{a}, v{b}", f"v_mul_f32 v{d + 1}, v{a}, v{b + 1}",
                f"v_fma_f32 v{d}, -v{a + 1}, v{b + 1}, v{d}", f"v_fmac_f32 v{d + 1}, v{a + 1}, v{b}"]

    def csq(self, d, a):
        return [f"v_mul_f32 v{d}, v{a}, v{a}", f"v_add_f32 v{d + 1}, v{a}, v{a}",
                f"v_fma_f32 v{d}, -v{a + 1}, v{a + 1}, v{d}", f"v_mul_f32 v{d + 1}, v{d + 1}, v{a + 1}"]

    def task_params(self):
        lr, li, dt, ar, ai, t0, t1, t2, sg = 168, 169, 170, 115, 116, 118, 119, 117, 120
        P = [122 + 2 * i for i in range(11)]
        a = P[0]
        t = f"""
        v_lshlrev_b32 v{dt}, 16, v{dt}
        v_lshlrev_b32 v{lr}, 16, v{lr}
        v_lshlrev_b32 v{li}, 16, v{li}
        v_mul_f32 v{dt}, {f32(LOG2E)}, v{dt}
        v_xor_b32 v{li}, 0x80000000, v{li}
        v_exp_f32 v{dt}, v{dt}
        v_mul_f32 v{t2}, v{lr}, v{lr}
        v_cvt_pk_bf16_f32 v{dt}, v{dt}, v{dt}
        v_fmac_f32 v{t2}, v{li}, v{li}
        v_lshlrev_b32 v{dt}, 16, v{dt}
        v_rcp_f32 v{t2}, v{t2}
        v_mul_f32 v{t0}, v{dt}, v{lr}
        v_mul_f32 v{t1}, v{dt}, v{li}
        v_mul_f32 v{t0}, {f32(LOG2E)}, v{t0}
        v_mul_f32 v{t1}, 0.15915494, v{t1}
        v_exp_f32 v{t0}, v{t0}
        v_rndne_f32 v{ar}, v{t1}
        v_sub_f32 v{t1}, v{t1}, v{ar}
        v_cos_f32 v{ar}, v{t1}
        v_sin_f32 v{ai}, v{t1}
        v_xor_b32 v{sg}, 0x80000000, v{cNs}
        v_mul_f32 v{a}, v{ar}, v{t0}
        v_mul_f32 v{a + 1}, v{ai}, v{t0}
        v_add_f32 v{t0}, -1.0, v{a}
        v_add_f32 v{t2}, v{t2}, v{t2}
        v_mul_f32 v{cK1}, v{t0}, v{lr}
        v_mul_f32 v{cK2}, v{a + 1}, v{lr}
        v_fmac_f32 v{cK1}, v{a + 1}, v{li}
        v_fma_f32 v{cK2}, -v{t0}, v{li}, v{cK2}
        v_mul_f32 v{cK1}, v{cK1}, v{t2}
        v_mul_f32 v{cK2}, v{cK2}, v{t2}
        v_mul_f32 v{cK1}, v{cK1}, v{cNs}
        v_mov_b32 v{cS1}, v{a}
        v_mul_f32 v{cS2}, v{a + 1}, v{sg}
        """.split("\n")
        t = [x.strip() for x in t if x.strip()]
        P[6] = cA64
        for i in range(1, 11):
            t += self.csq(P[i], P[i - 1])
        t += [f"v_cmp_lt_u32 vcc, 0, v{vH}", f"v_mov_b32 v{cA16}, v{P[4]}", f"v_mul_f32 v{cA16 + 1}, v{P[4] + 1}, v{sg}",
              f"v_cndmask_b32 v{t0}, 1.0, v{P[4]}, vcc", f"v_cndmask_b32 v{t1}, 0, v{P[4] + 1}, vcc",
              f"v_cndmask_b32 v{P[10]}, 1.0, v{P[10]}, vcc", f"v_cndmask_b32 v{P[10] + 1}, 0, v{P[10] + 1}, vcc",
              f"v_cmp_lt_f32 vcc, 0, v{sg}"]
        t += self.cmul(cM0, a, t0)
        t += [f"v_cndmask_b32 v{P[9]}, 1.0, v{P[9]}, vcc", f"v_cndmask_b32 v{P[9] + 1}, 0, v{P[9] + 1}, vcc"]
        t += self.cmul(cM1, cM0, P[5]) + self.cmul(t0, P[9], P[10])
        t += [f"v_mul_f32 v{cM0 + 1}, v{cM0 + 1}, v{sg}", f"v_mul_f32 v{cM1 + 1}, v{cM1 + 1}, v{sg}",
              f"v_cndmask_b32 v{cQ}, v{t0}, v{t1}, vcc", f"v_cndmask_b32 v{cQ + 1}, -v{t1}, v{t0}, vcc"]
        return t

    def lmad(self, d, z, x):
        return [f"v_fmac_f32_dpp v{d}, v{x}, v{z + 1} {SW}", f"v_fmac_f32 v{d}, v{z}, v{x}"]

    def task_scan1(self):
        coef = lambda j: ([f"v_mul_f32_dpp v{tmp + 4 + c}, v{accS + 16 * c + j}, v{cK2} {SW} bound_ctrl:0" for c in range(2)],
                          [f"v_fma_f32 v{accS + 16 * c + j}, v{cK1}, v{accS + 16 * c + j}, v{tmp + 4 + c}" for c in range(2)])
        g = 112
        t = sum(coef(0), []) + sum(coef(1), [])
        prev = [accS, accS + 16]
        for j in range(1, 16):
            cur = [tmp + 2 * (j % 2), tmp + 2 * (j % 2) + 1]
            c0, c1 = coef(j + 1) if j < 15 else ([f"v_mov_b32 v{g + 2}, s{sTag}", f"v_mov_b32 v{g + 3}, s{sTag + 1}"], [])
            t += [f"v_fma_f32 v{cur[c]}, v{cS1}, v{prev[c]}, v{accS + 16 * c + j}" for c in range(2)] + c0
            t += [f"v_fmac_f32_dpp v{cur[c]}, v{prev[c]}, v{cS2} {SW}" for c in range(2)] + c1
            prev = cur
        e0, e1 = prev
        t += [f"v_mov_b32 v{tmp}, v{e0}", f"v_mov_b32 v{g}, v{e1}", f"v_mov_b32 v{g + 4}, s{sXcc}", f"v_cmp_lt_u32 vcc, 0, v{vH}",
              f"v_permlane32_swap_b32 v{e0}, v{tmp}", f"v_permlane32_swap_b32 v{e1}, v{g}",
              f"v_cndmask_b32 v{tmp + 4}, 0, v{e0}, vcc"]
        t += self.lmad(tmp, cA16, e0) + self.lmad(accS, cS1, tmp + 4) + self.lmad(e1, cA16, tmp)
        t += [f"v_cndmask_b32 v{tmp}, v{tmp}, v{e1}, vcc"]
        t += self.lmad(g, cA16, e1) + self.lmad(accS + 16, cS1, tmp)
        t += [f"v_mov_b32_dpp v{g + 1}, v{g} {SW} bound_ctrl:0"]
        return t

    def publish(self):
        g = 112
        return [[f"buffer_store_dwordx4 {V(g, 4)}, v{vEst}, {S(sE, 4)}, 0 offen sc1"]] + self.o["xcc"] * [
                [f"buffer_store_dwordx3 {V(g + 2, 3)}, v{vXst}, {S(sIn, 4)}, 0 offen sc1"]]

    def task_mish(self, part, z):
        acc = accB if part else accA
        t = []
        for mh in (1, 0):
            for b in range(2):
                r = [acc + 16 * mh + 8 * z + 4 * b + x for x in range(4)]
                w = [tmp + x for x in range(4)]
                u = [tmp + 4 + x for x in range(4)]
                t += [f"v_exp_f32 v{w[x]}, v{r[x]}" for x in range(4)]
                t += [f"v_fma_f32 v{u[x]}, v{w[x]}, 0.5, 1.0" for x in range(4)]
                t += [f"v_fma_f32 v{u[x]}, v{w[x]}, v{u[x]}, 1.0" for x in range(4)]
                t += [f"v_rcp_f32 v{u[x]}, v{u[x]}" for x in range(4)]
                t += [f"v_fma_f32 v{r[x]}, -v{r[x]}, v{u[x]}, v{r[x]}" for x in range(4)]
                d = acc + 16 * mh + 8 * z + 2 * b
                t += [f"v_cvt_pk_bf16_f32 v{d + x}, v{r[2 * x]}, v{r[2 * x + 1]}" for x in range(2)]
            t += [f"ds_write_b128 v{wAct}, {V(acc + 16 * mh + 8 * z, 4)} offset:{ACT + part * 16384 + z * 8192 + mh * 1024}"]
        return t

    def gather_loads(self):
        return (self.o["xcc"] * [f"buffer_load_dwordx3 {V(vRec, 3)}, v{vXld}, {S(sIn, 4)}, 0 offen sc1"] +
                [f"buffer_load_dwordx4 {V(GQ[u], 4)}, v{vEld}, {S(sE, 4)}, 0 offen offset:{256 * u} sc1" for u in range(7, -1, -1)])

    def gather_eval(self):
        n = vRec + 3
        t = [f"v_mov_b32 v{n}, 0"]
        if self.o["xcc"]:
            t = [f"v_cmp_eq_u64 vcc, {S(sTag, 2)}, {V(vRec, 2)}", f"v_cmp_ne_u32 {S(sA, 2)}, s{sXcc}, v{vRec + 2}", f"v_mov_b32 v{n}, 0",
                 f"v_addc_co_u32 v{n}, vcc, 0, v{n}, vcc", f"s_and_b32 s{sSlow}, s{sA}, 0x7f"]
        q = GQ[7]
        for u in range(6, -1, -1):
            d = GQ[u]
            t += [f"v_cmp_eq_u64 vcc, {S(sTag, 2)}, {V(q + 2, 2)}", f"v_fmac_f32 v{d}, v{cA64}, v{q}", f"v_fmac_f32 v{d + 1}, v{cA64}, v{q + 1}",
                  f"v_addc_co_u32 v{n}, vcc, 0, v{n}, vcc", f"v_fma_f32 v{d}, -v{cA64 + 1}, v{q + 1}, v{d}", f"v_fmac_f32 v{d + 1}, v{cA64 + 1}, v{q}"]
            q = d
        own, oth = GQ[1], GQ[1] + 1
        t += [f"v_cmp_eq_u64 vcc, {S(sTag, 2)}, {V(q + 2, 2)}", f"v_mul_f32 v{oth}, v{cQ + 1}, v{q}", f"v_mul_f32 v{own}, v{cQ}, v{q}",
              f"v_addc_co_u32 v{n}, vcc, 0, v{n}, vcc", f"v_fma_f32 v{oth}, -v{cQ}, v{q + 1}, v{oth}", f"v_fmac_f32 v{own}, v{cQ + 1}, v{q + 1}",
              f"v_cmp_ne_u32 vcc, v{n}, v{cCnt}"]
        return t

    def task_carry(self):
        blk = Emit()
        blk(f"L_carry_retry:\ns_mov_b32 s{sC}, {self.o['spin']}\nL_carry_again:\ns_sleep 2")
        blk("\n".join(self.gather_loads()) + "\ns_waitcnt vmcnt(0)\n" + "\n".join(self.gather_eval()))
        blk(f"s_nop 1\ns_cbranch_vccz L_carry_ok\ns_sub_u32 s{sC}, s{sC}, 1\ns_cmp_lg_u32 s{sC}, 0\ns_cbranch_scc1 L_carry_again\ns_branch L_carry_ok")
        self.cold.append(blk.text())
        own, oth = GQ[1], GQ[1] + 1
        t = [lambda: self.e.wait(vm=self.e.vm_after("gather"))] + self.gather_eval() + ["s_cbranch_vccnz L_carry_retry", "L_carry_ok:"]
        t += [f"v_fmac_f32_dpp v{own}, v{oth}, v{cNs} {SW}", f"v_mov_b32 v{oth}, v{own}",
              f"v_xor_b32 v{cK1}, 16, v{wH}", f"v_xor_b32 v{cK2}, 64, v{wH}",
              f"v_permlane32_swap_b32 v{own}, v{oth}", f"v_add_f32 v{own}, v{own}, v{oth}",
              f"v_fmac_f32 v{accS}, v{cM0}, v{own}", f"v_fmac_f32 v{accS + 16}, v{cM1}, v{own}", f"v_xor_b32 v{cA16}, 0x50, v{wH}",
              f"v_fmac_f32_dpp v{accS}, v{own}, v{cM0 + 1} {SW}", f"v_fmac_f32_dpp v{accS + 16}, v{own}, v{cM1 + 1} {SW}"]
        return t

    def task_scan2(self):
        adr = {(0, 0): wH, (0, 1): cK1, (1, 0): cK2, (1, 1): cA16}
        cvt = lambda c, x: f"v_cvt_pk_bf16_f32 v{accS + 16 * c + 8 * (x // 4) + x % 4}, v{accS + 16 * c + 2 * x}, v{accS + 16 * c + 2 * x + 1}"
        wr = lambda c, z: f"ds_write_b128 v{adr[c, z]}, {V(accS + 16 * c + 8 * z, 4)}"
        t = []
        for j in range(1, 16):
            t += [f"v_fmac_f32 v{accS + 16 * c + j}, v{cS1}, v{accS + 16 * c + j - 1}" for c in range(2)]
            t += [cvt(j % 2, (j - 2) // 2)] if j >= 2 else []
            t += [f"v_fmac_f32_dpp v{accS + 16 * c + j}, v{accS + 16 * c + j - 1}, v{cS2} {SW}" for c in range(2)]
            if j == 9:
                t += [wr(0, 0), wr(1, 0)]
        t += [cvt(0, 7), cvt(1, 7), wr(0, 1), wr(1, 1)]
        return t

    def task_send(self, pair, flags):
        t = []
        for c in range(4):
            b = accR[pair] + 8 * c
            t += [f"v_cvt_pk_bf16_f32 v{b + x}, v{b + 2 * x}, v{b + 2 * x + 1}" for x in range(4)]
            t += [(f"buffer_store_dwordx4 {V(b, 4)}, v{vLane16}, {S(sIn, 4)}, s{sSend + pair} offen offset:{1024 * c} {flags}", f"send{pair}")]
        return t

    def prologue(self):
        e = self.e
        e.where = "prologue"
        rho, gam, P0 = 10, 11, 168
        e(f"""
        s_load_dwordx16 s[4:19], s[0:1], 0
        s_load_dwordx16 s[20:35], s[0:1], 64
        s_cmp_ge_u32 s2, 256
        s_cbranch_scc1 L_end
        v_lshrrev_b32 v8, 6, v0
        v_and_b32 v9, 63, v0
        s_lshr_b32 s{sA}, s2, 3
        v_readfirstlane_b32 s{sW}, v8
        s_and_b32 s{sB}, s2, 7
        s_cmp_lt_u32 s{sA}, 4
        s_cbranch_scc1 L_helper
        s_sub_u32 s{sA}, s{sA}, 4
        """)
        if self.o["mapping"] == "m":
            e(f"""
            s_mul_i32 s{sC}, s{sA}, 37
            s_lshr_b32 s{sC}, s{sC}, 8
            s_mul_i32 s{sD}, s{sC}, 7
            s_sub_u32 s{sG}, s{sA}, s{sD}
            s_lshl2_add_u32 s{sM}, s{sB}, s{sC}
            """)
        else:
            e(f"""
            s_and_b32 s{sC}, s{sB}, 1
            s_mul_i32 s{sC}, s{sC}, 28
            s_add_u32 s{sA}, s{sA}, s{sC}
            s_lshr_b32 s{sG}, s{sA}, 3
            s_and_b32 s{sA}, s{sA}, 7
            s_lshr_b32 s{sB}, s{sB}, 1
            s_lshl3_add_u32 s{sM}, s{sB}, s{sA}
            """)
        e(f"""
        v_lshrrev_b32 v{rho}, 3, v9
        v_and_b32 v{gam}, 7, v9
        s_lshl2_add_u32 s{sA}, s{sM}, s{sW}
        s_mul_i32 s{sA}, s{sA}, {16 * 896}
        v_mul_u32_u24 v12, 896, v{rho}
        v_lshlrev_b32 v13, 4, v{gam}
        v_add3_u32 v{vX}, v12, v13, s{sA}
        v_add_u32 v{vX + 1}, 7168, v{vX}
        s_lshl_b32 s{sRot}, s{sG}, 7
        s_mov_b32 s{sX + 2}, {2048 * 896}
        s_mov_b32 s{sX + 3}, 0x20000
        """)
        if self.o["stamps"]:
            e(f"s_mov_b32 s{sT2}, s2\nv_mov_b32 v7, 0")
        self.stamp()
        e(f"s_waitcnt lgkmcnt(0)\ns_mov_b32 s{sX}, s{pX}\ns_and_b32 s{sX + 1}, s{pX + 1}, 0xffff")
        xl = lambda a, j: e(f"buffer_load_dwordx4 {V(vXP + 28 * a + 4 * j, 4)}, v{vX + a}, {S(sX, 4)}, s{sRot + j} offen")
        xl(0, 0)
        xl(1, 0)
        e(f"s_load_dwordx2 {S(sTag, 2)}, {S(pWs, 2)}, 0")
        for j in range(1, 7):
            e(f"s_add_u32 s{sRot + j}, s{sRot + j - 1}, 128\ns_cmp_eq_u32 s{sRot + j}, 896\ns_cselect_b32 s{sRot + j}, 0, s{sRot + j}")
            xl(0, j)
        e(f"""
        v_and_b32 v{vN}, 31, v9
        v_lshrrev_b32 v{vH}, 5, v9
        v_bfe_u32 v4, v9, 4, 1
        v_lshl_add_u32 v4, v4, 3, v{gam}
        s_lshl2_add_u32 s{sA}, s{sG}, s{sW}
        s_lshl_b32 s{sB}, s{sA}, 5
        v_lshl_add_u32 v8, v4, 1, s{sB}
        s_lshl3_add_u32 s{sC}, s{sG}, s{sW}
        s_lshl_b32 s{sC}, s{sC}, 6
        v_lshl_add_u32 v5, v{vN}, 1, s{sC}
        v_add_u32 v13, s{sRot}, v13
        global_load_ushort v{P0 + 4}, v5, {S(pB1, 2)}
        global_load_ushort v{P0 + 8}, v5, {S(pB1, 2)} offset:256
        global_load_dwordx4 {V(P0 + 16, 4)}, v13, {S(pDs, 2)}
        global_load_ushort v{P0}, v8, {S(pLre, 2)}
        global_load_ushort v{P0 + 1}, v8, {S(pLim, 2)}
        global_load_ushort v{P0 + 2}, v8, {S(pDt, 2)}
        v_and_b32 v5, 1, v{rho}
        """)
        for s, p, size in ((sBre, pBre, 448 * 896), (sBim, pBim, 448 * 896), (sCre, pCre, 448 * 896), (sCim, pCim, 448 * 896),
                           (sW1, pW1, 448 * 3584), (sW2, pW2, 1792 * 896)):
            self.srd(s, p, size, 4096)
        e(f"""
        s_cmp_ge_u32 s{sW}, 2
        s_cselect_b32 s{sCown}, s{sCim}, s{sCre}
        s_cselect_b32 s{sCown + 1}, s{sCim + 1}, s{sCre + 1}
        s_cselect_b32 s{sSl}, s{sRot + 2}, s{sRot + 1}
        s_cselect_b32 s{sSl + 1}, s{sRot + 4}, s{sRot + 3}
        s_cselect_b32 s{sSl + 2}, s{sRot + 6}, s{sRot + 5}
        s_mov_b32 s{sCown + 2}, {448 * 896 + 4096}
        s_mov_b32 s{sCown + 3}, 0x20000
        """)
        self.srd(sOut, pOut, 2048 * 1792)
        self.srd(sIn, pWs, WS_SIZE)
        e(f"""
        s_lshl_b32 s{sB}, s{sA}, 13
        s_add_u32 s{sB}, s{sB}, {WS_E}
        s_add_u32 s{sE}, s{pWs}, s{sB}
        s_addc_u32 s{sE + 1}, s{pWs + 1}, 0
        s_and_b32 s{sE + 1}, s{sE + 1}, 0xffff
        s_mov_b32 s{sE + 2}, 8192
        s_mov_b32 s{sE + 3}, 0x20000
        s_lshl_b32 s{sD}, s{sW}, 12
        s_add_u32 s{sM0}, s{sD}, {RING - 4096}
        s_mul_i32 s{sB}, s{sA}, {16 * 896}
        s_add_u32 s{sB}, s{sB}, 4096
        v_lshrrev_b32 v13, 1, v{rho}
        v_xor_b32 v13, v13, v{gam}
        v_lshl_add_u32 v13, v13, 4, v12
        v_xor_b32 v8, 64, v13
        v_add_u32 v{vB}, s{sB}, v13
        s_sub_u32 s{sB}, s{sB}, 1024
        v_add_u32 v{vB + 1}, s{sB}, v8
        v_add_u32 v{vB + 2}, {7168 - 2048}, v{vB}
        v_add_u32 v{vB + 3}, {7168 - 2048}, v{vB + 1}
        s_and_b32 s{sA}, s{sW}, 1
        s_lshr_b32 s{sC}, s{sW}, 1
        s_mul_i32 s{sB}, s{sA}, {32 * 896}
        s_add_u32 s{sB}, s{sB}, s{sRot}
        s_add_u32 s{sB}, s{sB}, 4096
        v_add_u32 v{vC}, s{sB}, v13
        s_add_u32 s{sB}, s{sB}, {7168 - 1024}
        v_add_u32 v{vC + 1}, s{sB}, v8
        v_add_u32 v{vC + 2}, {2 * (7168 - 1024)}, v{vC}
        v_add_u32 v{vC + 3}, {2 * (7168 - 1024)}, v{vC + 1}
        v_and_b32 v13, 2, v{rho}
        v_lshlrev_b32 v13, 1, v13
        v_xor_b32 v13, v13, v{gam}
        v_lshlrev_b32 v13, 4, v13
        s_lshl2_add_u32 s{sT}, s{sG}, s{sA}
        s_mul_i32 s{sT}, s{sT}, {64 * 896}
        s_add_u32 s{sT}, s{sT}, 4096
        v_add3_u32 v{vW2}, v13, v12, s{sT}
        v_lshl_add_u32 v{vX}, v{rho}, 7, v13
        v_add_u32 v{vW2 + 1}, {8 * 896 - 1024}, v{vW2}
        v_add_u32 v{vW2 + 2}, {32 * 896 - 2048}, v{vW2}
        v_add_u32 v{vW2 + 3}, {40 * 896 - 3072}, v{vW2}
        s_mul_i32 s{sT}, s{sA}, {32 * 3584}
        s_lshl2_add_u32 s{sB}, s{sG}, s{sC}
        s_lshl_b32 s{sB}, s{sB}, 7
        s_add_u32 s{sT}, s{sT}, s{sB}
        s_add_u32 s{sT}, s{sT}, 4096
        v_lshlrev_b32 v12, 2, v12
        v_add3_u32 v{vW1}, v13, v12, s{sT}
        v_add_u32 v{vW1 + 1}, {8 * 3584 - 1024}, v{vW1}
        v_add_u32 v{vW1 + 2}, {2 * (8 * 3584 - 1024)}, v{vW1}
        v_add_u32 v{vW1 + 3}, {3 * (8 * 3584 - 1024)}, v{vW1}
        v_lshlrev_b32 v{vLane16}, 4, v9
        v_bfe_u32 v12, v9, 1, 3
        v_xor_b32 v12, v12, v{vH}
        v_lshlrev_b32 v12, 4, v12
        v_lshl_add_u32 v{rX}, v{vN}, 7, v12
        s_add_u32 s{sB}, s{sD}, {RING}
        """)
        for q in range(1, 4):
            e(f"v_xor_b32 v{rX + q}, {32 * q}, v{rX}")
        for q in range(4):
            e(f"v_add_u32 v{rC + q}, s{sB}, v{rX + q}\nv_add_u32 v{rC + 4 + q}, {3 * SLOT}, v{rC + q}")
        e(f"""
        v_and_b32 v8, 3, v9
        v_xor_b32 v8, v8, v{vH}
        v_lshlrev_b32 v8, 5, v8
        v_and_b32 v12, 4, v9
        v_lshl_add_u32 v8, v12, 2, v8
        v_lshl_add_u32 v8, v4, 7, v8
        v_lshl_add_u32 v8, v5, 13, v8
        s_lshl_b32 s{sB}, s{sW}, 11
        v_add_u32 v{wAct}, s{sB}, v{vLane16}
        s_add_u32 s{sB}, s{sB}, {HT}
        v_add_u32 v{wH}, s{sB}, v8
        s_lshl_b32 s{sB}, s{sC}, 10
        v_add_u32 v{rActO}, s{sB}, v{vLane16}
        v_lshlrev_b32 v8, 31, v5
        v_xor_b32 v{cNs}, 1.0, v8
        v_lshl_add_u32 v8, v{vH}, 1, v5
        s_sub_u32 s{sB}, 32, s{sM}
        v_lshl_add_u32 v12, v8, 3, s{sB}
        v_lshlrev_b32 v12, 8, v12
        v_lshl_add_u32 v{vEld}, v4, 4, v12
        v_cmp_eq_u32 vcc, 0, v8
        v_lshlrev_b32 v8, 3, v8
        v_sub_u32 v8, s{sM}, v8
        v_add_u32 v{vEst}, -256, v{vEld}
        v_med3_i32 v{cCnt}, v8, 0, 8
        v_mov_b32 v8, {OOB}
        v_cndmask_b32 v{vEst}, v8, v{vEst}, vcc
        v_cmp_gt_u32 vcc, 7, v9
        s_lshl_b32 s{sB}, s{sM}, 7
        s_add_u32 s{sB}, s{sB}, {WS_XCC}
        v_add_u32 v12, s{sB}, v{vLane16}
        v_cndmask_b32 v{vXld}, v8, v12, vcc
        {f"v_addc_co_u32 v{cCnt}, vcc, 0, v{cCnt}, vcc" if self.o["xcc"] else ""}
        v_cmp_eq_u32 vcc, s{sG}, v0
        s_getreg_b32 s{sXcc}, hwreg(HW_REG_XCC_ID, 0, 4)
        v_bfe_u32 v13, v9, 3, 1
        v_cndmask_b32 v{vXst}, v8, v12, vcc
        v_cmp_ne_u32 vcc, 0, v9
        v_bfe_u32 v12, v9, 2, 2
        v_and_b32 v5, 3, v9
        v_cndmask_b32 v{vOne}, 0, v8, vcc
        v_xor_b32 v8, s{sA}, v13
        v_lshlrev_b32 v8, 6, v8
        v_lshl_add_u32 v8, v12, 7, v8
        v_lshl_add_u32 v8, v5, 3, v8
        v_and_b32 v5, 16, v9
        v_lshl_add_u32 v8, v5, 1, v8
        s_lshl_b32 s{sB}, s{sC}, 12
        s_add_u32 s{sB}, s{sB}, {RES}
        v_lshl_add_u32 v{rRes}, v{vH}, 11, v8
        v_add_u32 v{rRes}, s{sB}, v{rRes}
        s_lshl_b32 s{sB}, s{sC}, 13
        s_add_u32 s{sB}, s{sB}, {RING}
        v_add_u32 v8, s{sB}, v8
        v_lshl_add_u32 v{rW1}, v{vH}, 10, v8
        v_lshl_add_u32 v{rW2}, v{vH}, 9, v8
        v_add_u32 v{rW1 + 1}, {3 * SLOT}, v{rW1}
        v_add_u32 v{rW2 + 1}, {3 * SLOT}, v{rW2}
        v_lshl_add_u32 v8, v13, 6, v5
        v_lshl_add_u32 v8, v12, 7, v8
        v_lshl_add_u32 v8, v{vH}, 10, v8
        v_xor_b32 v5, v9, v12
        v_and_b32 v5, 1, v5
        v_lshl_add_u32 v8, v5, 5, v8
        v_and_b32 v5, 2, v9
        v_lshl_add_u32 v8, v5, 2, v8
        v_add_u32 v{rH}, {HT}, v8
        v_xor_b32 v{rH + 1}, 64, v{rH}
        v_xor_b32 v{rH + 2}, 16, v{rH}
        v_xor_b32 v{rH + 3}, 0x50, v{rH}
        v_lshrrev_b32 v8, 2, v{rho}
        v_and_b32 v12, 3, v{rho}
        v_lshl_add_u32 v12, v8, 3, v12
        v_lshl_add_u32 v12, s{sA}, 2, v12
        v_bfe_u32 v8, v12, 1, 3
        v_xor_b32 v8, v8, v{gam}
        v_lshlrev_b32 v8, 4, v8
        v_lshl_add_u32 v12, v12, 7, v8
        v_lshl_add_u32 v12, s{sC}, 12, v12
        s_lshl_b32 s{sB}, s{sW}, 11
        s_add_u32 s{sB}, s{sB}, {RES}
        v_add_u32 v13, s{sB}, v{vX}
        s_lshl_b32 s{sT}, s{sA}, 7
        s_lshl1_add_u32 s{sB}, s{sM}, s{sC}
        s_mul_i32 s{sB}, s{sB}, {32 * 1792}
        s_add_u32 s{sB}, s{sB}, s{sT}
        s_lshl1_add_u32 s{sB}, s{sRot}, s{sB}
        v_lshl_add_u32 v{vOut}, v{vN}, 2, s{sB}
        v_mul_u32_u24 v8, {16 * 1792}, v{vH}
        v_add_u32 v{vOut}, v{vOut}, v8
        s_mul_i32 s{sOwnW}, s{sC}, {16 * 896}
        s_add_u32 s{sOwnW}, s{sOwnW}, s{sRot}
        s_mul_i32 s{sOwnC}, s{sRot}, 448
        s_mul_i32 s{sB}, s{sM}, {7 * 49152}
        s_add_u32 s{sB}, s{sB}, {WS_IN}
        s_mul_i32 s{sRecv}, s{sRot}, 384
        s_add_u32 s{sRecv}, s{sRecv}, s{sB}
        s_lshl1_add_u32 s{sSend}, s{sA}, s{sC}
        s_lshl_b32 s{sSend}, s{sSend}, 11
        s_add_u32 s{sRecv}, s{sRecv}, s{sSend}
        s_add_u32 s{sB}, s{sB}, s{sD}
        """)
        for i in range(3):
            e(f"s_mul_i32 s{sSend + i}, s{sSl + i}, 384\ns_add_u32 s{sSend + i}, s{sSend + i}, s{sB}\ns_add_u32 s{sB}, s{sB}, 16384")
        e(f"""
        s_mul_i32 s{sB}, s{sM}, {7 * 256}
        s_add_u32 s{sB}, s{sB}, s{sT}
        s_add_u32 s{sB}, s{sB}, {WS_FLAG}
        s_lshl1_add_u32 s{sT}, s{sRot}, s{sB}
        v_add_u32 v{vFlag}, s{sT}, v{vLane16}
        v_cmp_gt_u32 vcc, 6, v9
        v_mov_b32 v8, {OOB}
        s_lshl4_add_u32 s{sB}, s{sC}, s{sB}
        v_cndmask_b32 v{vFlag}, v8, v{vFlag}, vcc
        """)
        for i in range(3):
            e(f"s_lshl1_add_u32 s{sFlagOut + i}, s{sSl + i}, s{sB}\ns_add_u32 s{sB}, s{sB}, 32")
        for i in range(8):
            e(f"s_mov_b32 s{sRowOff + i}, {2 * i * 1792}")
        c0 = bf16_rne(LOG2E)
        c1 = bf16_rne(LOG2E - bf16_val(c0))
        c2 = bf16_rne(LOG2E - bf16_val(c0) - bf16_val(c1))
        e(f"""
        s_mov_b32 s{sSelLo}, 0x3f80
        s_mov_b32 s{sSelHi}, 0x3f800000
        s_mov_b32 s{sOnes}, 0x3f803f80
        s_mov_b32 s{sLn2}, {f32(LN2)}
        s_mov_b32 s{sLn2 + 1}, {f32(LN2)}
        s_mov_b32 s28, {f32(LOG2E)}
        s_mov_b32 s29, {f32(LOG2E)}
        s_add_u32 s{sTag}, s{sTag}, 2
        s_addc_u32 s{sTag + 1}, s{sTag + 1}, 0
        s_or_b32 s{sTag}, s{sTag}, 1
        v_cmp_eq_u32 vcc, 0, v{vH}
        v_mov_b32 v8, {c0 | (c1 << 16)}
        v_mov_b32 v{P0 + 13}, {c2}
        v_cndmask_b32 v{P0 + 12}, 0, v8, vcc
        v_cndmask_b32 v{P0 + 13}, 0, v{P0 + 13}, vcc
        """)
        for r in (P0 + 6, P0 + 7, P0 + 10, P0 + 11, P0 + 14, P0 + 15):
            e(f"v_mov_b32 v{r}, 0")
        self.stamp()
        for j in range(1, 7):
            xl(1, j)
        e.raw("HOPS:")
        self.stamp()
        U = list(range(16, 48)) + list(range(64, 80)) + list(range(160, 168))
        DS = 152
        sm, sq, t0, t1 = 8, 9, 10, 11
        early = [it for s in range(self.o["pre0"]) for it in self.dma_items(s)]
        for a in range(2):
            for j in range(7):
                p = vXP + 28 * a + 4 * j
                for x in range(4):
                    first = j == 0 and x == 0
                    e(f"v_dot2_f32_bf16 v{sm}, v{p + x}, s{sOnes}, {'0' if first else 'v%d' % sm}")
                    e(f"v_dot2_f32_bf16 v{sq}, v{p + x}, v{p + x}, {'0' if first else 'v%d' % sq}")
                for x in range(4):
                    e(f"v_lshlrev_b32 v{U[8 * j + 2 * x]}, 16, v{p + x}\nv_and_b32 v{U[8 * j + 2 * x + 1]}, 0xffff0000, v{p + x}")
                for _ in range(self.o.get("prerate", 2)):
                    if early:
                        self.put(early.pop(0))
            if a == 1:
                for it in early:
                    self.put(it)
            self.stamp()
            for m in ("quad_perm:[1,0,3,2]", "quad_perm:[2,3,0,1]", "row_half_mirror"):
                e(f"v_add_f32_dpp v{sm}, v{sm}, v{sm} {m} row_mask:0xf bank_mask:0xf bound_ctrl:0")
                e(f"v_add_f32_dpp v{sq}, v{sq}, v{sq} {m} row_mask:0xf bank_mask:0xf bound_ctrl:0")
            e(f"""
            v_mul_f32 v{sm}, {f32(1 / 448)}, v{sm}
            v_mul_f32 v{sq}, {f32(1 / 448)}, v{sq}
            v_fma_f32 v{sq}, -v{sm}, v{sm}, v{sq}
            v_max_f32 v{sq}, 0, v{sq}
            v_cvt_pk_bf16_f32 v{sm}, v{sm}, v{sq}
            v_and_b32 v{sq}, 0xffff0000, v{sm}
            v_add_f32 v{sq}, {f32(1e-5)}, v{sq}
            v_cvt_pk_bf16_f32 v{sq}, v{sq}, v{sq}
            v_lshlrev_b32 v{sq}, 16, v{sq}
            v_sqrt_f32 v{sq}, v{sq}
            v_lshlrev_b32 v{sm}, 16, v{sm}
            v_cvt_pk_bf16_f32 v{sq}, v{sq}, v{sq}
            v_lshlrev_b32 v{sq}, 16, v{sq}
            v_rcp_f32 v{sq}, v{sq}
            """)
            if a == 0:
                for b in (P0 + 4, P0 + 8):
                    e(f"v_mov_b32 v{b + 1}, v{b}\nv_lshl_or_b32 v{b}, v{b}, 16, v{b}")
                for x in range(4):
                    e(f"v_lshlrev_b32 v{DS + 2 * x}, 16, v{P0 + 16 + x}\nv_and_b32 v{DS + 2 * x + 1}, 0xffff0000, v{P0 + 16 + x}")
            e(f"v_mul_f32 v{t0}, {f32(LOG2E)}, v{sq}\nv_mul_f32 v{t1}, -v{sm}, v{t0}")
            for j in range(7):
                p = vXP + 28 * a + 4 * j
                n = [P0 + 16 + 2 * x if j == 0 else U[8 * j + 2 * x] for x in range(4)]
                for x in range(4):
                    e(f"v_pk_fma_f32 {V(n[x], 2)}, {V(U[8 * j + 2 * x], 2)}, {V(t0, 2)}, {V(t0, 2)} op_sel:[0,0,1] op_sel_hi:[1,0,1]")
                for x in range(4):
                    e(f"v_cvt_pk_bf16_f32 v{p + x}, v{n[x]}, v{n[x] + 1}")
                e(f"ds_write_b128 v12, {V(p, 4)} offset:{XN + j * 8192 + a * 2048}")
                if j == 0:
                    for x in range(4):
                        e(f"v_pk_mul_f32 {V(U[2 * x], 2)}, {V(U[2 * x], 2)}, s[28:29]")
                    for x in range(4):
                        e(f"v_pk_fma_f32 {V(U[2 * x], 2)}, {V(n[x], 2)}, {V(DS + 2 * x, 2)}, {V(U[2 * x], 2)}")
                    for x in range(4):
                        e(f"v_cvt_pk_bf16_f32 v{U[x]}, v{U[2 * x]}, v{U[2 * x + 1]}")
                    e(f"ds_write_b128 v13, {V(U[0], 4)} offset:{a * 1024}")
            if a == 0:
                e(f"v_mfma_f32_32x32x16_bf16 {V(accA, 16)}, {V(P0 + 4, 4)}, {V(P0 + 12, 4)}, 0")
                e(f"v_mfma_f32_32x32x16_bf16 {V(accB, 16)}, {V(P0 + 8, 4)}, {V(P0 + 12, 4)}, 0")
        rd = self.read_items(0)
        e.wait(vm=e.vm_after("dma0"))
        for it in rd[0::3]:
            self.put(it)
        e.wait(lgkm=4)
        e("s_barrier")
        self.stamp()
        if self.o.get("fine"):
            e("v_mov_b32 v0, 0\ns_memtime s[30:31]")
        for i, it in enumerate(rd):
            if i % 3:
                self.put(it)
        for s in range(self.o["pre0"], self.o.get("pre1", 6)):
            for it in self.dma_items(s):
                self.put(it)
        e.wait(vm=e.vm_after("dma1"))

    def plan(self):
        o = self.o
        NG = 42 * 8
        fixed = [[] for _ in range(NG)]
        queue = [(t, it) for t in range(max(o["pre0"], o.get("pre1", 6)), 42) for it in self.dma_items(t)]
        hfirst = min(self.first["S0"], self.first["S1"])
        self.barrier = [self.shared(s + 2) or s == hfirst - 2 for s in range(42)]
        self.last_read = [0] * 42
        res_stage = 36
        for s in range(42):
            rd = self.read_items(s + 1) if s < 41 else []
            if s == res_stage:
                rd.append([f"ds_read_b64_tr_b16 {V(tmp + 2 * i, 2)}, v{rRes} offset:{512 * i}" for i in range(4)])
            dm = []
            while queue and queue[0][0] <= s + o["dist"] and len(dm) < 5:
                t = queue[0][0]
                if t >= NSLOT and self.shared(t - NSLOT) and not any(self.barrier[t - NSLOT - 1:s]):
                    self.barrier[s - 1] = True
                assert t - NSLOT <= s and t >= s + 2
                dm.append(queue.pop(0)[1])
            load = [0.0] * 8
            load[7] = 3.0 if self.barrier[s] else 1.0
            span = 5 if len(rd) <= 12 else 6
            for i, it in enumerate(rd):
                g = i * span // len(rd) if len(rd) > 4 else (0, 1, 3, 4)[i]
                fixed[8 * s + g].append(it)
                load[g] += icost(it)
                self.last_read[s] = g
            g = 0
            for i, it in enumerate(dm):
                g = min(range(g, 8 - (len(dm) - 1 - i)), key=lambda x: (round(load[x], 1), x))
                fixed[8 * s + g].append(it)
                load[g] += icost(it)
                g += 1
        assert not queue
        fixed[8 * 13 + 7] += self.publish()
        gl = [[(x, "gather")] for x in self.gather_loads()]
        for i, it in enumerate(gl):
            g = o["g0"] + i * o["gstep"]
            while any(is_mem(x[-1]) and "buffer" in txt(x[-1]) for x in fixed[g]):
                g += 1
            fixed[g].append(it)
        assert g >= 8 * 20
        carry_from = g + o["glat"]
        hi_last = lambda kind: max(t for t in range(39) if self.kind(t)[0] == kind and t % NSLOT >= 3)
        assert hi_last("W2") <= 36 and hi_last("C") <= 36 and max(self.first["S0"], self.first["S1"]) <= 37
        fixed[8 * 36 + 5].append([f"s_lshl_b32 s{sA}, s{sW}, 12", f"s_and_b32 s{sA}, s{sA}, 0x2000", f"s_lshr_b32 s{sB}, s{sA}, 7",
                                  f"v_subrev_u32 v{rW2 + 1}, s{sA}, v{rW2 + 1}"])
        fixed[8 * 36 + 6].append([f"v_subrev_u32 v{rC + 4 + q}, s{sA}, v{rC + 4 + q}" for q in range(4)])
        fixed[8 * 36 + 7].append([f"v_xor_b32 v{rH}, s{sB}, v{rH}", f"v_xor_b32 v{rH + 2}, s{sB}, v{rH + 2}"])
        fixed[8 * min(self.done) + 6].append([f"v_mov_b32 v{vTagv}, s{sTag}", f"v_mov_b32 v{vTagv + 1}, s{sTag + 1}"])
        self.fixed = fixed
        self.base = [sum(icost(it) for it in fixed[g]) + ((3.0 if self.barrier[g // 8] else 1.0) if g % 8 == 7 else 0) for g in range(NG)]
        self.flow = [[] for _ in range(NG)]
        self.writes = [[] for _ in range(NG)]
        self.stream([(self.task_params(), 8 * 7)], 0)
        self.stream([(self.task_scan1(), 8 * 13 + 7)], 8 * 7 + 2)
        due = lambda s: 8 * (s - 3) + 5
        tasks = [(self.task_mish(0, 0), due(self.first["A0"])), (self.task_mish(0, 1), due(min(self.first["A1"], self.start[2] + 1)))]
        later = [(self.task_mish(1, z), due(self.first["B" + str(z)]), 8 * 21 + 1) for z in range(2)]
        sc = self.task_scan2()
        cut = [i for i, x in enumerate(sc) if is_dsw(x)][1] + 1
        later = sorted(later + [(None, due(hfirst))], key=lambda t: t[1])
        at = [t[0] is None for t in later].index(True)
        later[at:at + 1] = [(self.task_carry() + sc[:cut], due(hfirst - 1), carry_from), (sc[cut:], due(hfirst))]
        rel = min(later[0][2], tasks[1][1])
        tasks[1] = (tasks[1][0], tasks[1][1], 0, rel)
        self.stream(tasks, 8 * 14 + 1)
        self.stream(later, rel)
        unpack = [f"v_and_b32 v{accO + x}, 0xffff0000, v{tmp + x // 2}" if x % 2 else f"v_lshlrev_b32 v{accO + x}, 16, v{tmp + x // 2}" for x in range(16)]
        self.unpack = (unpack, 8 * 38)

    def place(self, tasks, g0, level, commit):
        base = self.base if commit else list(self.base)
        ends, g, credit, had_valu = [], g0, max(0.0, level - base[g0]), True
        for t in tasks:
            for x in t[0]:
                if is_dsw(x):
                    s = g // 8
                    at = max(g + 1, 8 * s + self.last_read[s] + 1)
                    if at % 8 == 7 or at // 8 != s:
                        at = 8 * (s + 1) + self.last_read[s + 1] + 1
                    if at % 8 < 6 and base[at] >= 8:
                        at += 1
                    if at > t[1] + 1:
                        return None
                    base[at] += cost(x)
                    if commit:
                        self.writes[at].append(x)
                    continue
                while g < (t[2] if len(t) > 2 else 0) or credit < 0.5 * cost(x) or (is_mem(x) and had_valu):
                    g += 1
                    if g >= (t[3] if len(t) > 3 else t[1]):
                        return None
                    credit = min(credit, 1.0) + level - base[g]
                    had_valu = False
                credit -= cost(x)
                base[g] += cost(x)
                had_valu |= not callable(x) and txt(x).startswith("v_")
                if commit:
                    self.flow[g].append(x)
            ends.append(g)
        return ends

    def stream(self, tasks, g0):
        while tasks:
            best = (0.0, 0)
            for n in range(len(tasks)):
                level = best[0]
                while self.place(tasks[:n + 1], g0, level, False) is None:
                    level += 0.05
                    assert level < 100
                if level > best[0]:
                    best = (level, n)
            g0 = self.place(tasks[:best[1] + 1], g0, best[0], True)[-1]
            tasks = tasks[best[1] + 1:]

    def stages(self, s0, s1):
        e = self.e
        for s in range(s0, s1):
            e.comment(f"stage {s} {self.kind(s)}")
            for k, mf in enumerate(self.mfmas(s)):
                g = 8 * s + k
                e.where = f"s{s}.g{k}"
                e(mf)
                flow = list(self.flow[g])
                if k == 7 and s < 41:
                    nw = 0
                    while nw < len(e.ds) and not e.ds[-1 - nw][0]:
                        nw += 1
                    e.wait(vm=e.vm_after(f"dma{s + 2}"), lgkm=nw)
                    if self.barrier[s]:
                        e("s_barrier")
                    if self.o.get("fine"):
                        a_, b_ = (28, 30) if s % 2 == 0 else (30, 28)
                        e.raw(f"s_memtime s[{a_}:{a_ + 1}]")
                        flow.append(lambda b_=b_, s=s: e.raw(f"v_writelane_b32 v0, s{b_}, {s}"))
                lead = []
                while flow and is_mem(flow[0]):
                    lead.append(flow.pop(0))
                mem = [it for it in self.fixed[g] if callable(it[-1]) or not txt(it[-1]).startswith("v_")]
                for it in mem + lead + self.writes[g] + [it for it in self.fixed[g] if it not in mem] + flow:
                    self.put(it)
            if s in (6, 13, 20, 26, 32, 38, 41):
                self.stamp()

    def ending(self, flags, sfx, ldf, plf):
        o, e = self.o, self.e
        saved = copy.deepcopy((self.base, [list(x) for x in self.writes])), [list(x) for x in self.fixed], [list(x) for x in self.flow]
        flag = lambda i: [lambda: self.e.wait(vm=self.e.vm_after(f"send{i}")),
                          f"buffer_store_dwordx2 {V(vTagv, 2)}, v{vOne}, {S(sIn, 4)}, s{sFlagOut + i} offen {flags}"]
        poll = lambda k: (f"buffer_load_dwordx2 {V(vPoll + 2 * k, 2)}, v{vFlag}, {S(sIn, 4)}, 0 offen {plf}", f"poll{k}")
        late = []
        for p in range(3):
            at = 8 * (self.done[p] + 1) + o.get("flaglat", 40)
            if at < 8 * 42:
                self.fixed[at].append(flag(p))
                self.base[at] += 4
            else:
                late.append(p)
        order = sorted(range(3), key=lambda p: self.done[p])
        for i, p in enumerate(order):
            g0 = 8 * (self.done[p] + 1) + 1
            span = min(o.get("sendspan", 12), 8 * (self.done[order[i + 1]] - self.done[p]) if i < 2 else o.get("lastspan", 7))
            self.stream([(self.task_send(p, flags), g0 + span)], g0)
        self.stream([self.unpack], 8 * 37)
        self.gapload = list(self.base)
        self.stages(min(self.done) + 1, 42)
        (self.base, self.writes), self.fixed, self.flow = saved
        e.where = "tail"
        buf = [accS + 8 * p if p < 4 else accB + 8 * (p - 4) for p in range(6)]

        def check(k, mask):
            blk = Emit()
            blk(f"""
            L_poll{k}{sfx}:
            s_mov_b32 s{sC}, {o['spin']}
            L_poll{k}{sfx}_again:
            {txt(poll(k))}
            s_waitcnt vmcnt(0)
            v_cmp_ne_u64 vcc, {S(sTag, 2)}, {V(vPoll + 2 * k, 2)}
            s_and_b32 s{sA}, vcc_lo, {mask}
            s_cbranch_scc0 L_got{k}{sfx}
            s_sub_u32 s{sC}, s{sC}, 1
            s_cmp_lg_u32 s{sC}, 0
            s_cbranch_scc1 L_poll{k}{sfx}_again
            s_branch L_got{k}{sfx}
            """)
            self.cold.append(blk.text())
            e(f"v_cmp_ne_u64 vcc, {S(sTag, 2)}, {V(vPoll + 2 * k, 2)}\ns_and_b32 s{sA}, vcc_lo, {mask}\ns_cbranch_scc1 L_poll{k}{sfx}\nL_got{k}{sfx}:")

        def loads(ps):
            for p in ps:
                for z in range(2):
                    e(f"buffer_load_dwordx4 {V(buf[p] + 4 * z, 4)}, v{vLane16}, {S(sIn, 4)}, s{sRecv} offen offset:{1024 * z} {ldf}")
                e(f"s_add_u32 s{sRecv}, s{sRecv}, 8192")

        def adds(ps):
            for p in ps:
                for x in range(16):
                    e(f"v_dot2_f32_bf16 v{accO + x}, v{buf[p] + x // 2}, s{sSelHi if x % 2 else sSelLo}, v{accO + x}")

        for p in late[:-1]:
            self.put(flag(p))
        self.put([poll(0)])
        for p in late[-1:]:
            self.put(flag(p))
        self.stamp()
        check(0, 0xF)
        self.put([poll(1)])
        loads(range(4))
        self.stamp()
        check(1, 0x30)
        loads(range(4, 6))
        self.stamp()
        adds(range(6))
        for x in range(0, 16, 2):
            e(f"v_pk_mul_f32 {V(accO + x, 2)}, {V(accO + x, 2)}, {S(sLn2, 2)}")
        for x in range(16):
            e(f"buffer_store_dword v{accO + x}, v{vOut}, {S(sOut, 4)}, s{sRowOff + x // 2} offen offset:{1792 * (x % 2)} {o['outf']}")
        e(f"""
        s_lshl2_add_u32 s{sA}, s{sG}, s{sW}
        s_lshl_b32 s{sA}, s{sA}, 5
        s_add_u32 s{sA}, s{sA}, s{sM}
        s_cmp_lg_u32 s{sA}, 31
        s_cbranch_scc1 L_fin{sfx}
        buffer_store_dwordx2 {V(vTagv, 2)}, v{vOne}, {S(sIn, 4)}, 0 offen sc1
        L_fin{sfx}:
        """)
        if o["stamps"]:
            e.wait(vm=0)
            self.stamp()
            e(f"""
            s_lshl2_add_u32 s{sA}, s{sT2}, s{sW}
            s_mul_i32 s{sA}, s{sA}, {8 * o['stamps']}
            s_add_u32 s{sA}, s{sA}, {STAMP_OFF}
            s_add_u32 s34, s34, s{sA}
            s_addc_u32 s35, s35, 0
            v_lshrrev_b32 v8, 2, v{vLane16}
            v_cmp_gt_u32 vcc, {8 * o['stamps']}, v8
            s_and_saveexec_b64 {S(sA, 2)}, vcc
            global_store_dword v8, v7, s[34:35]
            """)
        if o.get("fine"):
            e(f"""
            s_lshl2_add_u32 s{sA}, s2, s{sW}
            s_mul_i32 s{sA}, s{sA}, 512
            s_add_u32 s{sA}, s{sA}, {STAMP_OFF}
            s_add_u32 s34, s34, s{sA}
            s_addc_u32 s35, s35, 0
            v_lshrrev_b32 v8, 2, v{vLane16}
            v_mov_b32 v7, 0
            global_store_dword v8, v7, s[34:35]
            global_store_dword v8, v0, s[34:35] offset:256
            """)
        e("s_endpgm")

    def helper(self):
        b = Emit()
        if not self.o["helpers"]:
            b("L_helper:\ns_endpgm")
            return b.text()
        b(f"""
        L_helper:
        s_getpc_b64 s[36:37]
        L_pc:
        s_sub_u32 s36, s36, L_pc-{NAME}_kernel
        s_subb_u32 s37, s37, 0
        s_and_b32 s37, s37, 0xffff
        s_mov_b32 s38, L_hot_end-{NAME}_kernel
        s_mov_b32 s39, 0x20000
        v_lshlrev_b32 v1, 7, v0
        buffer_load_dword v2, v1, s[36:39], 0 offen
        s_lshl_b32 s{sC}, s2, 8
        v_add_u32 v3, s{sC}, v0
        s_waitcnt lgkmcnt(0)
        """)
        keep, self.e = self.e, b
        for s, p, size in ((40, pBre, 448 * 896), (44, pBim, 448 * 896), (48, pCre, 448 * 896), (52, pCim, 448 * 896), (60, pW1, 448 * 3584), (64, pW2, 1792 * 896)):
            self.srd(s, p, size)
        self.e = keep
        b(f"""
        v_lshrrev_b32 v4, 1, v3
        v_lshlrev_b32 v4, 7, v4
        v_and_b32 v5, 1, v3
        v_mov_b32 v8, {OOB}
        v_cmp_eq_u32 vcc, 0, v5
        v_cndmask_b32 v9, v8, v4, vcc
        v_cndmask_b32 v10, v4, v8, vcc
        buffer_load_dword v18, v9, s[40:43], 0 offen
        buffer_load_dword v11, v10, s[44:47], 0 offen
        v_lshlrev_b32 v4, 2, v4
        v_lshl_add_u32 v4, v5, 7, v4
        buffer_load_dword v12, v4, s[60:63], 0 offen
        buffer_load_dword v13, v4, s[60:63], 0 offen offset:256
        v_lshlrev_b32 v4, 7, v3
        s_mov_b32 s{sC}, 0x100000
        buffer_load_dword v14, v4, s[64:67], 0 offen
        buffer_load_dword v15, v4, s[64:67], s{sC} offen
        buffer_load_dword v16, v9, s[48:51], 0 offen
        buffer_load_dword v17, v10, s[52:55], 0 offen
        s_waitcnt vmcnt(0)
        s_endpgm
        """)
        return b.text()

    def build(self):
        o = self.o
        self.prologue()
        self.plan()
        self.stages(0, min(self.done) + 1)
        slow = ""
        if o["xcc"]:
            self.e(f"s_cmp_lg_u32 s{sSlow}, {1000 if o['force_slow'] else 0}\ns_cbranch_scc1 L_slow")
            fork, n0, st0 = copy.deepcopy(self.e), len(self.e.out), self.nstamp
            self.ending(o["fast"], "", o["ldf"], o["plf"])
            hot, gl = self.e, self.gapload
            self.e, self.nstamp = fork, st0
            self.ending("sc1", "_s", "sc1", "sc1")
            slow = "L_slow:\n" + "\n".join(self.e.out[n0:]) + "\n"
            self.e, self.gapload = hot, gl
        else:
            self.ending("sc1", "", "sc1", "sc1")
            hot = self.e
        head, body = hot.text().split("HOPS:\n")
        rest = "L_hot_end:\n" + "".join(self.cold) + slow
        helper = self.helper() + "L_end:\n    s_endpgm\n"
        wrap = lambda b: single(b, 256, 256, LDS_BYTES, vgpr=512, sgpr=102, accum=256, header=HEADER)
        nb = sum(map(is_ins, body.split("\n")))
        body, widened, padded = align(body, lambda b: wrap(b + head + rest + helper), count=nb)
        if not o["hops"]:
            return wrap(head + "    s_branch L_body\n" + helper + ".p2align 6\nL_body:\n" + body + rest)
        lines, sz = body.split("\n"), sizes(wrap(body + head + rest + helper))
        out, off, k, pads = [], 0, 0, 0
        for l in lines:
            if is_ins(l):
                if off >= 4096 * (pads + 1):
                    pads += 1
                    out += [f"L_page{pads}:", f"    s_cbranch_execz L_back{(pads - 1) // 4}", "    s_nop 0"]
                    off += 8
                off += sz[k]
                k += 1
            out.append(l)
        hop = "    s_mov_b64 exec, 0\n"
        for r in range((pads + 3) // 4):
            for w in range(4):
                if 4 * r + w < pads:
                    hop += f"    s_cmp_eq_u32 s{sW}, {w}\n    s_cbranch_scc1 L_page{4 * r + w + 1}\n"
            hop += f"L_back{r}:\n"
        hop += "    s_mov_b64 exec, -1\n    s_branch L_body\n"
        self.info = f"widened {widened} padded {padded} pages {pads} body {off}"
        return wrap(head + hop + helper + ".p2align 12\nL_body:\n" + "\n".join(out) + rest)


if __name__ == "__main__":
    out = sys.argv[1]
    opt = eval("dict(%s)" % (sys.argv[2] if len(sys.argv) > 2 else ""))
    g = Gen(**opt)
    open(out, "w").write(g.build())
    if opt.get("verbose"):
        print("\n".join(g.e.log))
        for s in range(42):
            print(s, " ".join("%4.1f" % x for x in g.gapload[8 * s:8 * s + 8]), " est %d" % sum(max(32, 9 + 4 * x) for x in g.gapload[8 * s:8 * s + 8]))
        print("total est", sum(max(32, 9 + 4 * x) for x in g.gapload))
    print(out, "auto waits", g.e.auto_waits, "auto nops", g.e.auto_nops, "stamps", g.nstamp, getattr(g, "info", ""))
```

```python
import copy
import struct
import sys
from asmlib import NAME, STAMP_OFF, single
from emit import Emit
from align import align, sizes, is_ins

HEADER = open("header.txt").read()

XN, ACT, HT = 0, 0, 32768
RING, SLOT, NSLOT = 57344, 16384, 6
RES = RING + NSLOT * SLOT
LDS_BYTES = RES + 8192
WS_XCC, WS_FLAG, WS_E, WS_IN, WS_SIZE = 4096, 16384, 131072, 1 << 20, 16 << 20
OOB = 0x7FFFFFF0
TILE = 64 * 1792
pX, pLre, pLim, pBre, pBim, pCre, pCim, pDt, pDs, pW1, pB1, pW2, pOut, pWs = 4, 6, 8, 10, 12, 14, 16, 18, 20, 24, 26, 28, 30, 34
sX, sBre, sBim, sCre, sCim, sCown, sW1, sW2, sOut, sE, sIn = 36, 40, 44, 48, 52, 56, 60, 64, 68, 72, 76
sRot, sSl, sW, sG, sM, sM0, sT, sT2, sTag = 80, 87, 90, 91, 92, 93, 94, 95, 96
sA, sB, sC, sD = 98, 99, 100, 101
sOwnW, sOwnC, sSend, sRecv, sFlagOut, sRowOff, sSelLo, sSelHi, sOnes, sLn2, sSlow, sXcc = 4, 5, 6, 9, 10, 13, 21, 22, 23, 24, 26, 27
vLane16, vN, vH, vEld, vOut, vFlag = 1, 2, 3, 4, 5, 6
tmp = 8
accS, accA, accB, accR = 16, 48, 80, (112, 144, 48)
accO = 176
vB, vW1, vW2, vC = 192, 196, 200, 204
rX, rW1, vEst, vXst, vRec, rC = 208, 212, 214, 215, 216, 220
vXld, vOne, rW2, rH, rActO, wAct, wH = 228, 229, 230, 232, 236, 237, 238
cS1, cS2, cK1, cK2, cA16, cM0, cM1, cA64, cQ, cNs, cCnt, rRes = 239, 240, 241, 242, 243, 245, 247, 249, 251, 253, 254, 255
GQ = [212, 196, 208, 192, 188, 184, 180, 176]
vTagv, vPoll, vO2 = 192, 194, 198
vX, vXP = 14, 96
LOG2E, LN2 = 1.4426950408889634, 0.6931471805599453
SW = "row_ror:8 row_mask:0xf bank_mask:0xf"


def f32(x):
    return struct.unpack("<I", struct.pack("<f", x))[0]


def bf16_rne(x):
    u = f32(x)
    return ((u + 0x7FFF + ((u >> 16) & 1)) >> 16) & 0xFFFF


def bf16_val(h):
    return struct.unpack("<f", struct.pack("<I", h << 16))[0]


def R(k, b, n):
    return "%s[%d:%d]" % (k, b, b + n - 1)


def V(b, n):
    return R("v", b, n)


def S(b, n):
    return R("s", b, n)


def txt(x):
    return x[0] if isinstance(x, tuple) else x


def cost(x):
    t = txt(x)
    if callable(t) or t.endswith(":"):
        return 0
    op = t.split()[0]
    if op.startswith(("v_exp", "v_rcp", "v_sin", "v_cos", "v_sqrt", "v_rsq")):
        return 2.1
    if op.startswith("ds_write"):
        return 8
    if op.startswith(("buffer_", "global_")):
        return 3.4
    if op.startswith("s_"):
        return 0.7
    return 1.03


def icost(it):
    return sum(cost(x) for x in (it if isinstance(it, list) else [it]))


def is_mem(x):
    return not callable(txt(x)) and txt(x).split()[0].startswith(("ds_", "buffer_", "global_"))


def is_dsw(x):
    return not callable(txt(x)) and txt(x).startswith("ds_write")


class Gen:
    def __init__(self, **opt):
        self.o = dict(stamps=0, helpers=1, fast=["", "", ""], ldf="sc1", plf="sc1", outf="sc1", dist=6, spin=1 << 16, pre0=6, hops=1, force_slow=0,
                      xcc=0, inout=0, preval=None, codepf=1, tlb=1, pre=(0, 0, 8, 0), mapping="m", g0=8 * 19, gstep=5, glat=18,
                      order="A00 A10 A20 A01 A11 A21 B00 B10 B20 B01 B11 B21 S00 S01 S10 S11 S20 S21")
        self.o.update(opt)
        self.order = self.o["order"].split()
        self.first = {k: 21 + min(i for i, x in enumerate(self.order) if x[0] + x[2] == k) for k in ("A0", "A1", "B0", "B1", "S0", "S1")}
        self.last = {k: 21 + max(i for i, x in enumerate(self.order) if x[0] + x[2] == k) for k in self.first}
        self.start = [21 + min(i for i, x in enumerate(self.order) if x[1] == str(p)) for p in range(3)]
        self.done = [21 + max(i for i, x in enumerate(self.order) if x[1] == str(p)) for p in range(3)]
        self.abuf = {k: 32 * i for i, k in enumerate(("A0", "A1", "B0", "B1", "S0", "S1"))}
        free = [192] + [self.abuf[k] for k in sorted(self.last, key=self.last.get)]
        self.obuf = [(free[0], free[1]), (free[2], free[3]), (free[0], free[1])]
        assert sorted(self.last.values())[0] < 38 and sorted(self.last.values())[2] < 39
        self.e = Emit()
        self.cold = []
        self.nstamp = 0

    def stamp(self):
        if self.o["stamps"]:
            k = self.nstamp
            if k in (1, 2):
                self.e.raw("%s s[%d:%d]" % (("s_memtime" if self.o.get("cyc") else "s_memrealtime",) + ((0, 1), (32, 33))[k - 1]))
                self.nstamp += 1
                return
            self.e("%s s[2:3]\ns_waitcnt lgkmcnt(0)" % ("s_memtime" if self.o.get("cyc") else "s_memrealtime"))
            self.e(f"v_writelane_b32 v7, s2, {2 * k}\nv_writelane_b32 v7, s3, {2 * k + 1}")
            if k == 3:
                self.e("v_writelane_b32 v7, s0, 2\nv_writelane_b32 v7, s1, 3\nv_writelane_b32 v7, s32, 4\nv_writelane_b32 v7, s33, 5")
            self.nstamp += 1

    def srd(self, s, p, size, shift=0):
        e = self.e
        if shift:
            e(f"s_sub_u32 s{s}, s{p}, {shift}\ns_subb_u32 s{s + 1}, s{p + 1}, 0\ns_and_b32 s{s + 1}, s{s + 1}, 0xffff")
        else:
            e(f"s_mov_b32 s{s}, s{p}\ns_and_b32 s{s + 1}, s{p + 1}, 0xffff")
        e(f"s_mov_b32 s{s + 2}, {size + shift}\ns_mov_b32 s{s + 3}, 0x20000")

    def put(self, it):
        for x in it if isinstance(it, list) else [it]:
            if callable(x):
                x()
            elif isinstance(x, tuple):
                self.e(x[0], tag=x[1])
            else:
                self.e(x)

    def kind(self, s):
        if s < 7:
            return ("B", s)
        if s < 21:
            return ("W1", (s - 7) // 7, (s - 7) % 7)
        if s < 39:
            x = self.order[s - 21]
            return ("C", int(x[1]), int(x[2])) if x[0] == "S" else ("W2", "AB".index(x[0]), int(x[1]), int(x[2]))
        if s < 41:
            return ("OW", s - 39)
        return ("OC",)

    def shared(self, s):
        return s < 42 and self.kind(s)[0] not in ("B", "C")

    def dma_items(self, s):
        k = self.kind(s)
        head = [f"s_add_u32 m0, s{sM0}, {(s % NSLOT) * SLOT + 4096}"]
        so = sT
        if k[0] == "B":
            so = sRot + k[1]
            srcs = [(vB + i, sBim if i % 2 else sBre) for i in range(4)]
        elif k[0] == "W1":
            head.append(f"s_mul_i32 s{sT}, s{sRot + k[2]}, 1792")
            if s == 14:
                head = [f"v_add_u32 v{vW1 + i}, 256, v{vW1 + i}" for i in range(4)] + head
            srcs = [(vW1 + i, sW1) for i in range(4)]
        elif k[0] == "W2":
            head.append(f"s_add_u32 s{sT}, s{sSl + k[2]}, {(128 * k[1] + 16 * k[3]) * 896}")
            srcs = [(vW2 + i, sW2) for i in range(4)]
        elif k[0] == "C":
            head.append(f"s_mul_i32 s{sT}, s{sSl + k[1]}, 448")
            srcs = [(vC + i, sCim if k[2] else sCre) for i in range(4)]
        elif k[0] == "OW":
            head.append(f"s_add_u32 s{sT}, s{sOwnW}, {128 * k[1] * 896}")
            srcs = [(vW2 + i, sW2) for i in range(4)]
        else:
            so = sOwnC
            srcs = [(vC + i, sCown) for i in range(4)]
        return [(head if i == 0 else []) + [(f"buffer_load_dwordx4 v{v}, {S(srd, 4)}, s{so} offen offset:{1024 * i} lds", f"dma{s}")]
                for i, (v, srd) in enumerate(srcs)]

    def read_items(self, s):
        k = self.kind(s)
        hi = (s % NSLOT) // 3
        so = ((s % NSLOT) % 3) * SLOT
        wb = 224 + 16 * (s % 2)
        oa, ow = self.obuf[s - 39] if s >= 39 else (0, 0)
        b128 = lambda a, v, off: [f"ds_read_b128 {R('a', a, 4)}, v{v} offset:{off}"]
        tr = lambda a, v, off, st, dv=0: [f"ds_read_b64_tr_b16 {R('a', a + 2 * x, 2)}, v{v + dv * x} offset:{off + st * x}" for x in range(2)]
        it = []
        if k[0] == "B":
            for q in range(4):
                it.append(b128(wb + 4 * q, rC + 4 * hi + q, so))
                it += [b128((s * 8 + q * 2 + mh) * 4, rX + q, s * 8192 + mh * 4096) for mh in range(2)]
        elif k[0] == "W1":
            it = [tr(wb + 4 * q, rW1 + hi, so + 2048 * q, 512) for q in range(4)]
        elif k[0] == "W2":
            for q in range(4):
                it.append(tr(wb + 4 * q, rW2 + hi, so + 2048 * q, 1024))
                kk = 4 * k[3] + q
                if s == self.first["AB"[k[1]] + str(k[3])]:
                    it += [b128(64 * k[1] + (kk * 2 + mh) * 4, vLane16, ACT + k[1] * 16384 + kk * 2048 + mh * 1024) for mh in range(2)]
        elif k[0] == "C":
            for q in range(4):
                it.append(b128(wb + 4 * q, rC + 4 * hi + q, so))
                if s == self.first["S" + str(k[2])]:
                    it += [tr(128 + ((4 * k[2] + q) * 2 + mh) * 4, rH + mh, 8192 * k[2] + 2048 * q, 512, 2) for mh in range(2)]
        elif k[0] == "OW":
            for kk in range(8):
                it.append(tr(ow + 4 * kk, rW2 + 1, so + 2048 * kk, 1024))
                it.append(b128(oa + 4 * kk, rActO, ACT + k[1] * 16384 + kk * 2048))
        else:
            for kk in range(8):
                it.append(b128(ow + 4 * kk, rC + 4 + kk % 4, so + 8192 * (kk // 4)))
                it.append(tr(oa + 4 * kk, rH, 8192 * (kk // 4) + 2048 * (kk % 4), 512, 2))
        return it

    def mfmas(self, s):
        k = self.kind(s)
        wb = 224 + 16 * (s % 2)
        M = lambda d, a, b, c: f"v_mfma_f32_32x32x16_bf16 {V(d, 16)}, {R('a', a, 4)}, {R('a', b, 4)}, {'0' if c is None else V(c, 16)}"
        out = []
        if k[0] == "B":
            for q in range(4):
                for mh in range(2):
                    d = accS + 16 * mh
                    out.append(M(d, (s * 8 + q * 2 + mh) * 4, wb + 4 * q, None if s == 0 and q == 0 else d))
        elif k[0] == "W1":
            acc = accB if k[1] else accA
            for q in range(4):
                for mh in (1, 0):
                    d = acc + 16 * mh
                    out.append(M(d, wb + 4 * q, (k[2] * 8 + q * 2 + mh) * 4, acc if k[2] == 0 and q == 0 else d))
        elif k[0] in ("W2", "C"):
            ab, pair, kh = (64 * k[1], k[2], k[3]) if k[0] == "W2" else (128, k[1], k[2])
            for q in range(4):
                for mh in range(2):
                    d = accR[pair] + 16 * mh
                    out.append(M(d, ab + ((4 * kh + q) * 2 + mh) * 4, wb + 4 * q, None if s == self.start[pair] and q == 0 else d))
        else:
            oa, ow = self.obuf[s - 39]
            out = [M(accO, oa + 4 * kk, ow + 4 * kk, accO) for kk in range(8)]
        return out

    def cmul(self, d, a, b):
        return [f"v_mul_f32 v{d}, v{a}, v{b}", f"v_mul_f32 v{d + 1}, v{a}, v{b + 1}",
                f"v_fma_f32 v{d}, -v{a + 1}, v{b + 1}, v{d}", f"v_fmac_f32 v{d + 1}, v{a + 1}, v{b}"]

    def csq(self, d, a):
        return [f"v_mul_f32 v{d}, v{a}, v{a}", f"v_add_f32 v{d + 1}, v{a}, v{a}",
                f"v_fma_f32 v{d}, -v{a + 1}, v{a + 1}, v{d}", f"v_mul_f32 v{d + 1}, v{d + 1}, v{a + 1}"]

    def task_params(self):
        lr, li, dt, ar, ai, t0, t1, t2, sg = 168, 169, 170, 115, 116, 118, 119, 117, 120
        P = [122 + 2 * i for i in range(11)]
        a = P[0]
        t = f"""
        v_lshlrev_b32 v{dt}, 16, v{dt}
        v_lshlrev_b32 v{lr}, 16, v{lr}
        v_lshlrev_b32 v{li}, 16, v{li}
        v_mul_f32 v{dt}, {f32(LOG2E)}, v{dt}
        v_xor_b32 v{li}, 0x80000000, v{li}
        v_exp_f32 v{dt}, v{dt}
        v_mul_f32 v{t2}, v{lr}, v{lr}
        v_cvt_pk_bf16_f32 v{dt}, v{dt}, v{dt}
        v_fmac_f32 v{t2}, v{li}, v{li}
        v_lshlrev_b32 v{dt}, 16, v{dt}
        v_rcp_f32 v{t2}, v{t2}
        v_mul_f32 v{t0}, v{dt}, v{lr}
        v_mul_f32 v{t1}, v{dt}, v{li}
        v_mul_f32 v{t0}, {f32(LOG2E)}, v{t0}
        v_mul_f32 v{t1}, 0.15915494, v{t1}
        v_exp_f32 v{t0}, v{t0}
        v_rndne_f32 v{ar}, v{t1}
        v_sub_f32 v{t1}, v{t1}, v{ar}
        v_cos_f32 v{ar}, v{t1}
        v_sin_f32 v{ai}, v{t1}
        v_xor_b32 v{sg}, 0x80000000, v{cNs}
        v_mul_f32 v{a}, v{ar}, v{t0}
        v_mul_f32 v{a + 1}, v{ai}, v{t0}
        v_add_f32 v{t0}, -1.0, v{a}
        v_add_f32 v{t2}, v{t2}, v{t2}
        v_mul_f32 v{cK1}, v{t0}, v{lr}
        v_mul_f32 v{cK2}, v{a + 1}, v{lr}
        v_fmac_f32 v{cK1}, v{a + 1}, v{li}
        v_fma_f32 v{cK2}, -v{t0}, v{li}, v{cK2}
        v_mul_f32 v{cK1}, v{cK1}, v{t2}
        v_mul_f32 v{cK2}, v{cK2}, v{t2}
        v_mul_f32 v{cK1}, v{cK1}, v{cNs}
        v_mov_b32 v{cS1}, v{a}
        v_mul_f32 v{cS2}, v{a + 1}, v{sg}
        """.split("\n")
        t = [x.strip() for x in t if x.strip()]
        P[6] = cA64
        for i in range(1, 11):
            t += self.csq(P[i], P[i - 1])
        t += [f"v_cmp_lt_u32 vcc, 0, v{vH}", f"v_mov_b32 v{cA16}, v{P[4]}", f"v_mul_f32 v{cA16 + 1}, v{P[4] + 1}, v{sg}",
              f"v_cndmask_b32 v{t0}, 1.0, v{P[4]}, vcc", f"v_cndmask_b32 v{t1}, 0, v{P[4] + 1}, vcc",
              f"v_cndmask_b32 v{P[10]}, 1.0, v{P[10]}, vcc", f"v_cndmask_b32 v{P[10] + 1}, 0, v{P[10] + 1}, vcc",
              f"v_cmp_lt_f32 vcc, 0, v{sg}"]
        t += self.cmul(cM0, a, t0)
        t += [f"v_cndmask_b32 v{P[9]}, 1.0, v{P[9]}, vcc", f"v_cndmask_b32 v{P[9] + 1}, 0, v{P[9] + 1}, vcc"]
        t += self.cmul(cM1, cM0, P[5]) + self.cmul(t0, P[9], P[10])
        t += [f"v_mul_f32 v{cM0 + 1}, v{cM0 + 1}, v{sg}", f"v_mul_f32 v{cM1 + 1}, v{cM1 + 1}, v{sg}",
              f"v_cndmask_b32 v{cQ}, v{t0}, v{t1}, vcc", f"v_cndmask_b32 v{cQ + 1}, -v{t1}, v{t0}, vcc"]
        return t

    def lmad(self, d, z, x):
        return [f"v_fmac_f32_dpp v{d}, v{x}, v{z + 1} {SW}", f"v_fmac_f32 v{d}, v{z}, v{x}"]

    def task_scan1(self):
        coef = lambda j: ([f"v_mul_f32_dpp v{tmp + 4 + c}, v{accS + 16 * c + j}, v{cK2} {SW} bound_ctrl:0" for c in range(2)],
                          [f"v_fma_f32 v{accS + 16 * c + j}, v{cK1}, v{accS + 16 * c + j}, v{tmp + 4 + c}" for c in range(2)])
        g = 112
        t = sum(coef(0), []) + sum(coef(1), [])
        prev = [accS, accS + 16]
        for j in range(1, 16):
            cur = [tmp + 2 * (j % 2), tmp + 2 * (j % 2) + 1]
            c0, c1 = coef(j + 1) if j < 15 else ([f"v_mov_b32 v{g + 2}, s{sTag}", f"v_mov_b32 v{g + 3}, s{sTag + 1}"], [])
            t += [f"v_fma_f32 v{cur[c]}, v{cS1}, v{prev[c]}, v{accS + 16 * c + j}" for c in range(2)] + c0
            t += [f"v_fmac_f32_dpp v{cur[c]}, v{prev[c]}, v{cS2} {SW}" for c in range(2)] + c1
            prev = cur
        e0, e1 = prev
        t += [f"v_mov_b32 v{tmp}, v{e0}", f"v_mov_b32 v{g}, v{e1}", f"v_mov_b32 v{g + 4}, s{sXcc}", f"v_cmp_lt_u32 vcc, 0, v{vH}",
              f"v_permlane32_swap_b32 v{e0}, v{tmp}", f"v_permlane32_swap_b32 v{e1}, v{g}",
              f"v_cndmask_b32 v{tmp + 4}, 0, v{e0}, vcc"]
        t += self.lmad(tmp, cA16, e0) + self.lmad(accS, cS1, tmp + 4) + self.lmad(e1, cA16, tmp)
        t += [f"v_cndmask_b32 v{tmp}, v{tmp}, v{e1}, vcc"]
        t += self.lmad(g, cA16, e1) + self.lmad(accS + 16, cS1, tmp)
        t += [f"v_mov_b32_dpp v{g + 1}, v{g} {SW} bound_ctrl:0"]
        return t

    def publish(self):
        g = 112
        return [[f"buffer_store_dwordx4 {V(g, 4)}, v{vEst}, {S(sE, 4)}, 0 offen sc1"]] + self.o["xcc"] * [
                [f"buffer_store_dwordx3 {V(g + 2, 3)}, v{vXst}, {S(sIn, 4)}, 0 offen sc1"]]

    def task_mish(self, part, z):
        acc = accB if part else accA
        t = []
        for mh in (1, 0):
            for b in range(2):
                r = [acc + 16 * mh + 8 * z + 4 * b + x for x in range(4)]
                w = [tmp + x for x in range(4)]
                u = [tmp + 4 + x for x in range(4)]
                t += [f"v_exp_f32 v{w[x]}, v{r[x]}" for x in range(4)]
                t += [f"v_fma_f32 v{u[x]}, v{w[x]}, 0.5, 1.0" for x in range(4)]
                t += [f"v_fma_f32 v{u[x]}, v{w[x]}, v{u[x]}, 1.0" for x in range(4)]
                t += [f"v_rcp_f32 v{u[x]}, v{u[x]}" for x in range(4)]
                t += [f"v_fma_f32 v{r[x]}, -v{r[x]}, v{u[x]}, v{r[x]}" for x in range(4)]
                d = acc + 16 * mh + 8 * z + 2 * b
                t += [f"v_cvt_pk_bf16_f32 v{d + x}, v{r[2 * x]}, v{r[2 * x + 1]}" for x in range(2)]
            t += [f"ds_write_b128 v{wAct}, {V(acc + 16 * mh + 8 * z, 4)} offset:{ACT + part * 16384 + z * 8192 + mh * 1024}"]
        return t

    def gather_loads(self):
        return (self.o["xcc"] * [f"buffer_load_dwordx3 {V(vRec, 3)}, v{vXld}, {S(sIn, 4)}, 0 offen sc1"] +
                [f"buffer_load_dwordx4 {V(GQ[u], 4)}, v{vEld}, {S(sE, 4)}, 0 offen offset:{256 * u} sc1" for u in range(7, -1, -1)])

    def gather_eval(self):
        n = vRec + 3
        t = [f"v_mov_b32 v{n}, 0"]
        if self.o["xcc"]:
            t = [f"v_cmp_eq_u64 vcc, {S(sTag, 2)}, {V(vRec, 2)}", f"v_cmp_ne_u32 {S(sA, 2)}, s{sXcc}, v{vRec + 2}", f"v_mov_b32 v{n}, 0",
                 f"v_addc_co_u32 v{n}, vcc, 0, v{n}, vcc", f"s_and_b32 s{sSlow}, s{sA}, 0x7f"]
        q = GQ[7]
        for u in range(6, -1, -1):
            d = GQ[u]
            t += [f"v_cmp_eq_u64 vcc, {S(sTag, 2)}, {V(q + 2, 2)}", f"v_fmac_f32 v{d}, v{cA64}, v{q}", f"v_fmac_f32 v{d + 1}, v{cA64}, v{q + 1}",
                  f"v_addc_co_u32 v{n}, vcc, 0, v{n}, vcc", f"v_fma_f32 v{d}, -v{cA64 + 1}, v{q + 1}, v{d}", f"v_fmac_f32 v{d + 1}, v{cA64 + 1}, v{q}"]
            q = d
        own, oth = GQ[1], GQ[1] + 1
        t += [f"v_cmp_eq_u64 vcc, {S(sTag, 2)}, {V(q + 2, 2)}", f"v_mul_f32 v{oth}, v{cQ + 1}, v{q}", f"v_mul_f32 v{own}, v{cQ}, v{q}",
              f"v_addc_co_u32 v{n}, vcc, 0, v{n}, vcc", f"v_fma_f32 v{oth}, -v{cQ}, v{q + 1}, v{oth}", f"v_fmac_f32 v{own}, v{cQ + 1}, v{q + 1}",
              f"v_cmp_ne_u32 vcc, v{n}, v{cCnt}"]
        return t

    def task_carry(self):
        blk = Emit()
        blk(f"L_carry_retry:\ns_mov_b32 s{sC}, {self.o['spin']}\nL_carry_again:\ns_sleep 2")
        blk("\n".join(self.gather_loads()) + "\ns_waitcnt vmcnt(0)\n" + "\n".join(self.gather_eval()))
        blk(f"s_nop 1\ns_cbranch_vccz L_carry_ok\ns_sub_u32 s{sC}, s{sC}, 1\ns_cmp_lg_u32 s{sC}, 0\ns_cbranch_scc1 L_carry_again\ns_branch L_carry_ok")
        self.cold.append(blk.text())
        own, oth = GQ[1], GQ[1] + 1
        t = [lambda: self.e.wait(vm=self.e.vm_after("gather"))] + self.gather_eval() + ["s_cbranch_vccnz L_carry_retry", "L_carry_ok:"]
        t += [f"v_fmac_f32_dpp v{own}, v{oth}, v{cNs} {SW}", f"v_mov_b32 v{oth}, v{own}",
              f"v_xor_b32 v{cK1}, 16, v{wH}", f"v_xor_b32 v{cK2}, 64, v{wH}",
              f"v_permlane32_swap_b32 v{own}, v{oth}", f"v_add_f32 v{own}, v{own}, v{oth}",
              f"v_fmac_f32 v{accS}, v{cM0}, v{own}", f"v_fmac_f32 v{accS + 16}, v{cM1}, v{own}", f"v_xor_b32 v{cA16}, 0x50, v{wH}",
              f"v_fmac_f32_dpp v{accS}, v{own}, v{cM0 + 1} {SW}", f"v_fmac_f32_dpp v{accS + 16}, v{own}, v{cM1 + 1} {SW}"]
        return t

    def task_scan2(self):
        adr = {(0, 0): wH, (0, 1): cK1, (1, 0): cK2, (1, 1): cA16}
        cvt = lambda c, x: f"v_cvt_pk_bf16_f32 v{accS + 16 * c + 8 * (x // 4) + x % 4}, v{accS + 16 * c + 2 * x}, v{accS + 16 * c + 2 * x + 1}"
        wr = lambda c, z: f"ds_write_b128 v{adr[c, z]}, {V(accS + 16 * c + 8 * z, 4)}"
        t = []
        for j in range(1, 16):
            t += [f"v_fmac_f32 v{accS + 16 * c + j}, v{cS1}, v{accS + 16 * c + j - 1}" for c in range(2)]
            t += [cvt(j % 2, (j - 2) // 2)] if j >= 2 else []
            t += [f"v_fmac_f32_dpp v{accS + 16 * c + j}, v{accS + 16 * c + j - 1}, v{cS2} {SW}" for c in range(2)]
            if j == 9:
                t += [wr(0, 0), wr(1, 0)]
        t += [cvt(0, 7), cvt(1, 7), wr(0, 1), wr(1, 1)]
        return t

    def task_send(self, pair, flags):
        t = []
        for c in range(4):
            b = accR[pair] + 8 * c
            t += [f"v_cvt_pk_bf16_f32 v{b + x}, v{b + 2 * x}, v{b + 2 * x + 1}" for x in range(4)]
            if pair == 2 and self.o["inout"]:
                t += [(f"buffer_store_dwordx4 {V(b, 4)}, v{vO2 + c // 2}, {S(sOut, 4)}, s{sRowOff + 4 * (c % 2)} offen {flags}", f"send{pair}")]
            else:
                t += [(f"buffer_store_dwordx4 {V(b, 4)}, v{vLane16}, {S(sIn, 4)}, s{sSend + pair} offen offset:{1024 * c} {flags}", f"send{pair}")]
        return t

    def prologue(self):
        e = self.e
        e.where = "prologue"
        rho, gam, P0 = 10, 11, 168
        e(f"""
        s_load_dwordx16 s[4:19], s[0:1], 0
        s_load_dwordx16 s[20:35], s[0:1], 64
        s_getpc_b64 s[36:37]
        s_cmp_ge_u32 s2, 256
        s_cbranch_scc1 L_end
        s_lshr_b32 s{sA}, s2, 3
        v_and_b32 v{gam}, 7, v0
        v_lshl_add_u32 v8, s{sA}, 3, v{gam}
        v_lshlrev_b32 v8, 7, v8
        v_min_u32 v8, L_hot_end-{NAME}_kernel-32, v8
        {"global_load_dword v171, v8, s[36:37]" if self.o["codepf"] else ""}
        v_lshrrev_b32 v8, 6, v0
        v_and_b32 v9, 63, v0
        v_readfirstlane_b32 s{sW}, v8
        s_and_b32 s{sB}, s2, 7
        s_cmp_lt_u32 s{sA}, 4
        s_cbranch_scc1 L_helper
        s_sub_u32 s{sA}, s{sA}, 4
        """)
        if self.o["mapping"] == "m":
            e(f"""
            s_mul_i32 s{sC}, s{sA}, 37
            s_lshr_b32 s{sC}, s{sC}, 8
            s_mul_i32 s{sD}, s{sC}, 7
            s_sub_u32 s{sG}, s{sA}, s{sD}
            s_lshl2_add_u32 s{sM}, s{sB}, s{sC}
            """)
        else:
            e(f"""
            s_and_b32 s{sC}, s{sB}, 1
            s_mul_i32 s{sC}, s{sC}, 28
            s_add_u32 s{sA}, s{sA}, s{sC}
            s_lshr_b32 s{sG}, s{sA}, 3
            s_and_b32 s{sA}, s{sA}, 7
            s_lshr_b32 s{sB}, s{sB}, 1
            s_lshl3_add_u32 s{sM}, s{sB}, s{sA}
            """)
        e(f"""
        v_lshrrev_b32 v{rho}, 3, v9
        s_lshl2_add_u32 s{sA}, s{sM}, s{sW}
        s_mul_i32 s{sA}, s{sA}, {16 * 896}
        v_mul_u32_u24 v12, 896, v{rho}
        v_lshlrev_b32 v13, 4, v{gam}
        v_add3_u32 v{vX}, v12, v13, s{sA}
        v_add_u32 v{vX + 1}, 7168, v{vX}
        s_lshl_b32 s{sRot}, s{sG}, 7
        s_mov_b32 s{sX + 2}, {2048 * 896}
        s_mov_b32 s{sX + 3}, 0x20000
        """)
        if self.o["stamps"]:
            e(f"s_mov_b32 s{sT2}, s2\nv_mov_b32 v7, 0")
        self.stamp()
        e(f"s_waitcnt lgkmcnt(0)\ns_mov_b32 s{sX}, s{pX}\ns_and_b32 s{sX + 1}, s{pX + 1}, 0xffff")
        xl = lambda a, j: e(f"buffer_load_dwordx4 {V(vXP + 28 * a + 4 * j, 4)}, v{vX + a}, {S(sX, 4)}, s{sRot + j} offen")
        xl(0, 0)
        xl(1, 0)
        e(f"s_load_dwordx2 {S(sTag, 2)}, {S(pWs, 2)}, 0")
        for j in range(1, 7):
            e(f"s_add_u32 s{sRot + j}, s{sRot + j - 1}, 128\ns_cmp_eq_u32 s{sRot + j}, 896\ns_cselect_b32 s{sRot + j}, 0, s{sRot + j}")
            xl(0, j)
        e(f"""
        v_and_b32 v{vN}, 31, v9
        v_lshrrev_b32 v{vH}, 5, v9
        v_bfe_u32 v4, v9, 4, 1
        v_lshl_add_u32 v4, v4, 3, v{gam}
        s_lshl2_add_u32 s{sA}, s{sG}, s{sW}
        s_lshl_b32 s{sB}, s{sA}, 5
        v_lshl_add_u32 v{P0 + 2}, v4, 1, s{sB}
        s_lshl3_add_u32 s{sC}, s{sG}, s{sW}
        s_lshl_b32 s{sC}, s{sC}, 6
        v_lshl_add_u32 v{P0 + 8}, v{vN}, 1, s{sC}
        v_add_u32 v{P0 + 16}, s{sRot}, v13
        v_and_b32 v5, 1, v{rho}
        """)
        for s, p, size in ((sBre, pBre, 448 * 896), (sBim, pBim, 448 * 896), (sCre, pCre, 448 * 896), (sCim, pCim, 448 * 896),
                           (sW1, pW1, 448 * 3584), (sW2, pW2, 1792 * 896)):
            self.srd(s, p, size, 4096)
        e(f"""
        s_cmp_ge_u32 s{sW}, 2
        s_cselect_b32 s{sCown}, s{sCim}, s{sCre}
        s_cselect_b32 s{sCown + 1}, s{sCim + 1}, s{sCre + 1}
        s_cselect_b32 s{sSl}, s{sRot + 2}, s{sRot + 1}
        s_cselect_b32 s{sSl + 1}, s{sRot + 4}, s{sRot + 3}
        s_cselect_b32 s{sSl + 2}, s{sRot + 6}, s{sRot + 5}
        s_mov_b32 s{sCown + 2}, {448 * 896 + 4096}
        s_mov_b32 s{sCown + 3}, 0x20000
        """)
        self.srd(sOut, pOut, 2048 * 1792)
        self.srd(sIn, pWs, WS_SIZE)
        e(f"""
        s_lshl_b32 s{sB}, s{sA}, 13
        s_add_u32 s{sB}, s{sB}, {WS_E}
        s_add_u32 s{sE}, s{pWs}, s{sB}
        s_addc_u32 s{sE + 1}, s{pWs + 1}, 0
        s_and_b32 s{sE + 1}, s{sE + 1}, 0xffff
        s_mov_b32 s{sE + 2}, 8192
        s_mov_b32 s{sE + 3}, 0x20000
        s_lshl_b32 s{sD}, s{sW}, 12
        s_add_u32 s{sM0}, s{sD}, {RING - 4096}
        s_mul_i32 s{sB}, s{sA}, {16 * 896}
        s_add_u32 s{sB}, s{sB}, 4096
        v_lshrrev_b32 v13, 1, v{rho}
        v_xor_b32 v13, v13, v{gam}
        v_lshl_add_u32 v13, v13, 4, v12
        v_xor_b32 v8, 64, v13
        v_add_u32 v{vB}, s{sB}, v13
        s_sub_u32 s{sB}, s{sB}, 1024
        v_add_u32 v{vB + 1}, s{sB}, v8
        v_add_u32 v{vB + 2}, {7168 - 2048}, v{vB}
        v_add_u32 v{vB + 3}, {7168 - 2048}, v{vB + 1}
        s_and_b32 s{sA}, s{sW}, 1
        s_lshr_b32 s{sC}, s{sW}, 1
        s_mul_i32 s{sB}, s{sA}, {32 * 896}
        s_add_u32 s{sB}, s{sB}, s{sRot}
        s_add_u32 s{sB}, s{sB}, 4096
        v_add_u32 v{vC}, s{sB}, v13
        s_add_u32 s{sB}, s{sB}, {7168 - 1024}
        v_add_u32 v{vC + 1}, s{sB}, v8
        v_add_u32 v{vC + 2}, {2 * (7168 - 1024)}, v{vC}
        v_add_u32 v{vC + 3}, {2 * (7168 - 1024)}, v{vC + 1}
        v_and_b32 v13, 2, v{rho}
        v_lshlrev_b32 v13, 1, v13
        v_xor_b32 v13, v13, v{gam}
        v_lshlrev_b32 v13, 4, v13
        s_lshl2_add_u32 s{sT}, s{sG}, s{sA}
        s_mul_i32 s{sT}, s{sT}, {64 * 896}
        s_add_u32 s{sT}, s{sT}, 4096
        v_add3_u32 v{vW2}, v13, v12, s{sT}
        v_lshl_add_u32 v{vX}, v{rho}, 7, v13
        v_add_u32 v{vW2 + 1}, {8 * 896 - 1024}, v{vW2}
        v_add_u32 v{vW2 + 2}, {32 * 896 - 2048}, v{vW2}
        v_add_u32 v{vW2 + 3}, {40 * 896 - 3072}, v{vW2}
        s_mul_i32 s{sT}, s{sA}, {32 * 3584}
        s_lshl2_add_u32 s{sB}, s{sG}, s{sC}
        s_lshl_b32 s{sB}, s{sB}, 7
        s_add_u32 s{sT}, s{sT}, s{sB}
        s_add_u32 s{sT}, s{sT}, 4096
        v_lshlrev_b32 v12, 2, v12
        v_add3_u32 v{vW1}, v13, v12, s{sT}
        v_add_u32 v{vW1 + 1}, {8 * 3584 - 1024}, v{vW1}
        v_add_u32 v{vW1 + 2}, {2 * (8 * 3584 - 1024)}, v{vW1}
        v_add_u32 v{vW1 + 3}, {3 * (8 * 3584 - 1024)}, v{vW1}
        v_lshlrev_b32 v{vLane16}, 4, v9
        v_bfe_u32 v12, v9, 1, 3
        v_xor_b32 v12, v12, v{vH}
        v_lshlrev_b32 v12, 4, v12
        v_lshl_add_u32 v{rX}, v{vN}, 7, v12
        s_add_u32 s{sB}, s{sD}, {RING}
        """)
        for q in range(1, 4):
            e(f"v_xor_b32 v{rX + q}, {32 * q}, v{rX}")
        for q in range(4):
            e(f"v_add_u32 v{rC + q}, s{sB}, v{rX + q}\nv_add_u32 v{rC + 4 + q}, {3 * SLOT}, v{rC + q}")
        e(f"""
        v_and_b32 v8, 3, v9
        v_xor_b32 v8, v8, v{vH}
        v_lshlrev_b32 v8, 5, v8
        v_and_b32 v12, 4, v9
        v_lshl_add_u32 v8, v12, 2, v8
        v_lshl_add_u32 v8, v4, 7, v8
        v_lshl_add_u32 v8, v5, 13, v8
        s_lshl_b32 s{sB}, s{sW}, 11
        v_add_u32 v{wAct}, s{sB}, v{vLane16}
        s_add_u32 s{sB}, s{sB}, {HT}
        v_add_u32 v{wH}, s{sB}, v8
        s_lshl_b32 s{sB}, s{sC}, 10
        v_add_u32 v{rActO}, s{sB}, v{vLane16}
        v_lshlrev_b32 v8, 31, v5
        v_xor_b32 v{cNs}, 1.0, v8
        v_lshl_add_u32 v8, v{vH}, 1, v5
        s_sub_u32 s{sB}, 32, s{sM}
        v_lshl_add_u32 v12, v8, 3, s{sB}
        v_lshlrev_b32 v12, 8, v12
        v_lshl_add_u32 v{vEld}, v4, 4, v12
        v_cmp_eq_u32 vcc, 0, v8
        v_lshlrev_b32 v8, 3, v8
        v_sub_u32 v8, s{sM}, v8
        v_add_u32 v{vEst}, -256, v{vEld}
        v_med3_i32 v{cCnt}, v8, 0, 8
        v_mov_b32 v8, {OOB}
        v_cndmask_b32 v{vEst}, v8, v{vEst}, vcc
        v_cmp_gt_u32 vcc, 7, v9
        s_lshl_b32 s{sB}, s{sM}, 7
        s_add_u32 s{sB}, s{sB}, {WS_XCC}
        v_add_u32 v12, s{sB}, v{vLane16}
        v_cndmask_b32 v{vXld}, v8, v12, vcc
        {f"v_addc_co_u32 v{cCnt}, vcc, 0, v{cCnt}, vcc" if self.o["xcc"] else ""}
        v_cmp_eq_u32 vcc, s{sG}, v0
        v_bfe_u32 v13, v9, 3, 1
        v_cndmask_b32 v{vXst}, v8, v12, vcc
        v_cmp_ne_u32 vcc, 0, v9
        v_bfe_u32 v12, v9, 2, 2
        v_and_b32 v5, 3, v9
        v_cndmask_b32 v{vOne}, 0, v8, vcc
        v_xor_b32 v8, s{sA}, v13
        v_lshlrev_b32 v8, 6, v8
        v_lshl_add_u32 v8, v12, 7, v8
        v_lshl_add_u32 v8, v5, 3, v8
        v_and_b32 v5, 16, v9
        v_lshl_add_u32 v8, v5, 1, v8
        s_lshl_b32 s{sB}, s{sC}, 12
        s_add_u32 s{sB}, s{sB}, {RES}
        v_lshl_add_u32 v{rRes}, v{vH}, 11, v8
        v_add_u32 v{rRes}, s{sB}, v{rRes}
        s_lshl_b32 s{sB}, s{sC}, 13
        s_add_u32 s{sB}, s{sB}, {RING}
        v_add_u32 v8, s{sB}, v8
        v_lshl_add_u32 v{rW1}, v{vH}, 10, v8
        v_lshl_add_u32 v{rW2}, v{vH}, 9, v8
        v_add_u32 v{rW1 + 1}, {3 * SLOT}, v{rW1}
        v_add_u32 v{rW2 + 1}, {3 * SLOT}, v{rW2}
        v_lshl_add_u32 v8, v13, 6, v5
        v_lshl_add_u32 v8, v12, 7, v8
        v_lshl_add_u32 v8, v{vH}, 10, v8
        v_xor_b32 v5, v9, v12
        v_and_b32 v5, 1, v5
        v_lshl_add_u32 v8, v5, 5, v8
        v_and_b32 v5, 2, v9
        v_lshl_add_u32 v8, v5, 2, v8
        v_add_u32 v{rH}, {HT}, v8
        v_xor_b32 v{rH + 1}, 64, v{rH}
        v_xor_b32 v{rH + 2}, 16, v{rH}
        v_xor_b32 v{rH + 3}, 0x50, v{rH}
        v_lshrrev_b32 v8, 2, v{rho}
        v_and_b32 v12, 3, v{rho}
        v_lshl_add_u32 v12, v8, 3, v12
        v_lshl_add_u32 v12, s{sA}, 2, v12
        v_bfe_u32 v8, v12, 1, 3
        v_xor_b32 v8, v8, v{gam}
        v_lshlrev_b32 v8, 4, v8
        v_lshl_add_u32 v12, v12, 7, v8
        v_lshl_add_u32 v12, s{sC}, 12, v12
        s_lshl_b32 s{sB}, s{sW}, 11
        s_add_u32 s{sB}, s{sB}, {RES}
        v_add_u32 v13, s{sB}, v{vX}
        s_lshl_b32 s{sT}, s{sA}, 7
        s_lshl1_add_u32 s{sB}, s{sM}, s{sC}
        s_mul_i32 s{sB}, s{sB}, {32 * 1792}
        s_add_u32 s{sB}, s{sB}, s{sT}
        s_lshl1_add_u32 s{sB}, s{sRot}, s{sB}
        v_lshl_add_u32 v{vOut}, v{vN}, 2, s{sB}
        v_mul_u32_u24 v8, {16 * 1792}, v{vH}
        v_add_u32 v{vOut}, v{vOut}, v8
        global_load_ushort v{P0 + 4}, v{P0 + 8}, {S(pB1, 2)}
        global_load_ushort v{P0 + 8}, v{P0 + 8}, {S(pB1, 2)} offset:256
        global_load_dwordx4 {V(P0 + 16, 4)}, v{P0 + 16}, {S(pDs, 2)}
        s_mov_b64 s[0:1], {S(pLre, 2)}
        s_mov_b64 s[30:31], {S(pLim, 2)}
        s_mov_b64 s[32:33], {S(pDt, 2)}
        s_getreg_b32 s{sXcc}, hwreg(HW_REG_XCC_ID, 0, 4)
        s_mul_i32 s{sOwnW}, s{sC}, {16 * 896}
        s_add_u32 s{sOwnW}, s{sOwnW}, s{sRot}
        s_mul_i32 s{sOwnC}, s{sRot}, 448
        s_mul_i32 s{sB}, s{sM}, {TILE}
        s_add_u32 s{sB}, s{sB}, {WS_IN}
        s_lshl_b32 s{sRecv}, s{sRot}, 7
        s_add_u32 s{sRecv}, s{sRecv}, s{sB}
        s_lshl1_add_u32 s{sSend}, s{sA}, s{sC}
        s_lshl_b32 s{sSend}, s{sSend}, 11
        s_add_u32 s{sRecv}, s{sRecv}, s{sSend}
        s_add_u32 s{sB}, s{sB}, s{sD}
        """)
        for i in range(3):
            e(f"s_lshl_b32 s{sSend + i}, s{sSl + i}, 7\ns_add_u32 s{sSend + i}, s{sSend + i}, s{sB}\ns_add_u32 s{sB}, s{sB}, {32 * TILE}")
        e(f"""
        s_mul_i32 s{sB}, s{sM}, {7 * 256}
        s_add_u32 s{sB}, s{sB}, s{sT}
        s_add_u32 s{sB}, s{sB}, {WS_FLAG}
        s_lshl1_add_u32 s{sT}, s{sRot}, s{sB}
        v_add_u32 v{vFlag}, s{sT}, v{vLane16}
        v_cmp_gt_u32 vcc, 6, v9
        v_mov_b32 v8, {OOB}
        s_lshl4_add_u32 s{sB}, s{sC}, s{sB}
        v_cndmask_b32 v{vFlag}, v8, v{vFlag}, vcc
        """)
        for i in range(3):
            e(f"s_lshl1_add_u32 s{sFlagOut + i}, s{sSl + i}, s{sB}\ns_add_u32 s{sB}, s{sB}, 32")
        for i in range(8):
            e(f"s_mov_b32 s{sRowOff + i}, {2 * i * 1792}")
        c0 = bf16_rne(LOG2E)
        c1 = bf16_rne(LOG2E - bf16_val(c0))
        c2 = bf16_rne(LOG2E - bf16_val(c0) - bf16_val(c1))
        e(f"""
        s_mov_b32 s{sSelLo}, 0x3f80
        s_mov_b32 s{sSelHi}, 0x3f800000
        s_mov_b32 s{sOnes}, 0x3f803f80
        s_mov_b32 s{sLn2}, {f32(LN2)}
        s_mov_b32 s{sLn2 + 1}, {f32(LN2)}
        s_mov_b32 s28, {f32(LOG2E)}
        s_mov_b32 s29, {f32(LOG2E)}
        v_cmp_eq_u32 vcc, 0, v{vH}
        v_mov_b32 v8, {c0 | (c1 << 16)}
        v_mov_b32 v{P0 + 13}, {c2}
        v_cndmask_b32 v{P0 + 12}, 0, v8, vcc
        v_cndmask_b32 v{P0 + 13}, 0, v{P0 + 13}, vcc
        """)
        for r in (P0 + 6, P0 + 7, P0 + 10, P0 + 11, P0 + 14, P0 + 15):
            e(f"v_mov_b32 v{r}, 0")
        for j in range(1, 7):
            xl(1, j)
        e(f"global_load_ushort v{P0}, v{P0 + 2}, s[0:1]\nglobal_load_ushort v{P0 + 1}, v{P0 + 2}, s[30:31]\nglobal_load_ushort v{P0 + 2}, v{P0 + 2}, s[32:33]")
        self.stamp()
        if self.o["tlb"]:
            e(f"buffer_load_dword v{vRec}, v{vOne}, {S(sE, 4)}, 0 offen")
            e(f"buffer_load_dword v{vRec + 1}, v{vOne}, {S(sIn, 4)}, s{sRecv} offen")
            e(f"buffer_load_dword v{vRec + 2}, v{vOut}, {S(sOut, 4)}, 0 offen")
        e.raw("HOPS:")
        self.stamp()
        U = list(range(16, 48)) + list(range(64, 80)) + list(range(160, 168))
        DS = 152
        sm, sq, t0, t1 = 8, 9, 10, 11
        early = [it for s in range(6) for it in self.dma_items(s)]
        share = lambda n, j: (n * (j + 1)) // 7 - (n * j) // 7
        for a in range(2):
            for j in range(7):
                p = vXP + 28 * a + 4 * j
                for x in range(4):
                    first = j == 0 and x == 0
                    e(f"v_dot2_f32_bf16 v{sm}, v{p + x}, s{sOnes}, {'0' if first else 'v%d' % sm}")
                    e(f"v_dot2_f32_bf16 v{sq}, v{p + x}, v{p + x}, {'0' if first else 'v%d' % sq}")
                for x in range(4):
                    e(f"v_lshlrev_b32 v{U[8 * j + 2 * x]}, 16, v{p + x}\nv_and_b32 v{U[8 * j + 2 * x + 1]}, 0xffff0000, v{p + x}")
                for _ in range(share(self.o["pre"][2 * a], j)):
                    self.put(early.pop(0))
            self.stamp()
            for m in ("quad_perm:[1,0,3,2]", "quad_perm:[2,3,0,1]", "row_half_mirror"):
                e(f"v_add_f32_dpp v{sm}, v{sm}, v{sm} {m} row_mask:0xf bank_mask:0xf bound_ctrl:0")
                e(f"v_add_f32_dpp v{sq}, v{sq}, v{sq} {m} row_mask:0xf bank_mask:0xf bound_ctrl:0")
            e(f"""
            v_mul_f32 v{sm}, {f32(1 / 448)}, v{sm}
            v_mul_f32 v{sq}, {f32(1 / 448)}, v{sq}
            v_fma_f32 v{sq}, -v{sm}, v{sm}, v{sq}
            v_max_f32 v{sq}, 0, v{sq}
            v_cvt_pk_bf16_f32 v{sm}, v{sm}, v{sq}
            v_and_b32 v{sq}, 0xffff0000, v{sm}
            v_add_f32 v{sq}, {f32(1e-5)}, v{sq}
            v_cvt_pk_bf16_f32 v{sq}, v{sq}, v{sq}
            v_lshlrev_b32 v{sq}, 16, v{sq}
            v_sqrt_f32 v{sq}, v{sq}
            v_lshlrev_b32 v{sm}, 16, v{sm}
            v_cvt_pk_bf16_f32 v{sq}, v{sq}, v{sq}
            v_lshlrev_b32 v{sq}, 16, v{sq}
            v_rcp_f32 v{sq}, v{sq}
            """)
            if a == 0:
                e(f"s_add_u32 s{sTag}, s{sTag}, 2\ns_addc_u32 s{sTag + 1}, s{sTag + 1}, 0\ns_or_b32 s{sTag}, s{sTag}, 1")
                for b in (P0 + 4, P0 + 8):
                    e(f"v_mov_b32 v{b + 1}, v{b}\nv_lshl_or_b32 v{b}, v{b}, 16, v{b}")
                for x in range(4):
                    e(f"v_lshlrev_b32 v{DS + 2 * x}, 16, v{P0 + 16 + x}\nv_and_b32 v{DS + 2 * x + 1}, 0xffff0000, v{P0 + 16 + x}")
            e(f"v_mul_f32 v{t0}, {f32(LOG2E)}, v{sq}\nv_mul_f32 v{t1}, -v{sm}, v{t0}")
            for j in range(7):
                p = vXP + 28 * a + 4 * j
                n = [P0 + 16 + 2 * x if j == 0 else U[8 * j + 2 * x] for x in range(4)]
                for x in range(4):
                    e(f"v_pk_fma_f32 {V(n[x], 2)}, {V(U[8 * j + 2 * x], 2)}, {V(t0, 2)}, {V(t0, 2)} op_sel:[0,0,1] op_sel_hi:[1,0,1]")
                for x in range(4):
                    e(f"v_cvt_pk_bf16_f32 v{p + x}, v{n[x]}, v{n[x] + 1}")
                e(f"ds_write_b128 v12, {V(p, 4)} offset:{XN + j * 8192 + a * 2048}")
                for _ in range(share(self.o["pre"][2 * a + 1], j)):
                    self.put(early.pop(0))
                if j == 0:
                    for x in range(4):
                        e(f"v_pk_mul_f32 {V(U[2 * x], 2)}, {V(U[2 * x], 2)}, s[28:29]")
                    for x in range(4):
                        e(f"v_pk_fma_f32 {V(U[2 * x], 2)}, {V(n[x], 2)}, {V(DS + 2 * x, 2)}, {V(U[2 * x], 2)}")
                    for x in range(4):
                        e(f"v_cvt_pk_bf16_f32 v{U[x]}, v{U[2 * x]}, v{U[2 * x + 1]}")
                    e(f"ds_write_b128 v13, {V(U[0], 4)} offset:{a * 1024}")
            if a == 0:
                e(f"v_mfma_f32_32x32x16_bf16 {V(accA, 16)}, {V(P0 + 4, 4)}, {V(P0 + 12, 4)}, 0")
                e(f"v_mfma_f32_32x32x16_bf16 {V(accB, 16)}, {V(P0 + 8, 4)}, {V(P0 + 12, 4)}, 0")
        rd = self.read_items(0)
        e.wait(vm=e.vm_after("dma0"))
        for it in rd[0::3]:
            self.put(it)
        e.wait(lgkm=4)
        e("s_barrier")
        self.stamp()
        if self.o.get("fine"):
            e("v_mov_b32 v0, 0\nv_mov_b32 v7, 0\ns_mov_b32 s32, 0\ns_memtime s[30:31]")
        for i, it in enumerate(rd):
            if i % 3:
                self.put(it)
        while 24 - len(early) < self.o.get("pre1", 12):
            self.put(early.pop(0))
        self.issued = 24 - len(early)
        e.wait(vm=e.vm_after("dma1"))

    def plan(self):
        o = self.o
        NG = 42 * 8
        fixed = [[] for _ in range(NG)]
        queue = [(t, it) for t in range(42) for it in self.dma_items(t)][self.issued:]
        hfirst = min(self.first["S0"], self.first["S1"])
        self.barrier = [self.shared(s + 2) or s == hfirst - 2 for s in range(42)]
        self.last_read = [0] * 42
        res_stage = 36
        for s in range(42):
            rd = self.read_items(s + 1) if s < 41 else []
            if s == res_stage:
                rd.append([f"ds_read_b64_tr_b16 {V(tmp + 2 * i, 2)}, v{rRes} offset:{512 * i}" for i in range(4)])
            dm = []
            while queue and queue[0][0] <= s + o["dist"] and len(dm) < o.get("catch", 5):
                t = queue[0][0]
                if t >= NSLOT and self.shared(t - NSLOT) and not any(self.barrier[t - NSLOT - 1:s]):
                    self.barrier[s - 1] = True
                assert t - NSLOT <= s and t >= s + 2
                dm.append(queue.pop(0)[1])
            load = [0.0] * 8
            load[7] = 3.0 if self.barrier[s] else 1.0
            span = 5 if len(rd) <= 12 else 6
            for i, it in enumerate(rd):
                g = i * span // len(rd) if len(rd) > 4 else (0, 1, 3, 4)[i]
                fixed[8 * s + g].append(it)
                load[g] += icost(it)
                self.last_read[s] = g
            g = 0
            for i, it in enumerate(dm):
                g = min(range(g, 8 - (len(dm) - 1 - i)), key=lambda x: (round(load[x], 1), x))
                fixed[8 * s + g].append(it)
                load[g] += icost(it)
                g += 1
        assert not queue
        fixed[8 * 13 + 7] += self.publish()
        gl = [[(x, "gather")] for x in self.gather_loads()]
        for i, it in enumerate(gl):
            g = o["g0"] + i * o["gstep"]
            while any(is_mem(x[-1]) and "buffer" in txt(x[-1]) for x in fixed[g]):
                g += 1
            fixed[g].append(it)
        assert g >= 8 * 20
        carry_from = g + o["glat"]
        hi_last = lambda kind: max(t for t in range(39) if self.kind(t)[0] == kind and t % NSLOT >= 3)
        assert hi_last("W2") <= 36 and hi_last("C") <= 36 and max(self.first["S0"], self.first["S1"]) <= 37
        fixed[8 * 36 + 5].append([f"s_lshl_b32 s{sA}, s{sW}, 12", f"s_and_b32 s{sA}, s{sA}, 0x2000", f"s_lshr_b32 s{sB}, s{sA}, 7",
                                  f"v_subrev_u32 v{rW2 + 1}, s{sA}, v{rW2 + 1}"])
        fixed[8 * 36 + 6].append([f"v_subrev_u32 v{rC + 4 + q}, s{sA}, v{rC + 4 + q}" for q in range(4)])
        fixed[8 * 36 + 7].append([f"v_xor_b32 v{rH}, s{sB}, v{rH}", f"v_xor_b32 v{rH + 2}, s{sB}, v{rH + 2}"])
        fixed[8 * min(self.done) + 6].append([f"v_mov_b32 v{vTagv}, s{sTag}", f"v_mov_b32 v{vTagv + 1}, s{sTag + 1}"])
        if o["inout"]:
            fixed[8 * 34 + 0].append([f"s_lshr_b32 s{sC}, s{sW}, 1", f"s_lshl2_add_u32 s{sC}, s{sM}, s{sC}", f"s_mul_i32 s{sC}, s{sC}, {16 * 1792}",
                                      f"v_lshrrev_b32 v{vO2}, 7, v{vLane16}", f"v_and_b32 v{vO2 + 1}, 0x70, v{vLane16}"])
            fixed[8 * 34 + 1].append([f"s_and_b32 s{sD}, s{sW}, 1", f"s_lshl_b32 s{sD}, s{sD}, 7", f"s_add_u32 s{sC}, s{sC}, s{sD}",
                                      f"v_mul_u32_u24 v{vO2}, 1792, v{vO2}", f"v_add3_u32 v{vEld}, v{vO2}, v{vO2 + 1}, s{sC}"])
            fixed[8 * 34 + 3].append([f"s_lshl_b32 s{sC}, s{sSl + 2}, 1", f"s_lshr_b32 s{sD}, s{sW}, 1", f"s_mul_i32 s{sD}, s{sD}, {16 * 1792}",
                                      f"s_lshl1_add_u32 s{sD}, s{sRot}, s{sD}", f"v_add_u32 v{vO2}, s{sC}, v{vEld}"])
            fixed[8 * 34 + 4].append([f"v_add_u32 v{vO2 + 1}, {32 * 1792}, v{vO2}", f"v_add_u32 v{vEld}, s{sD}, v{vEld}", f"v_add_u32 v{cCnt}, {16 * 1792}, v{vEld}"])
        self.fixed = fixed
        self.base = [sum(icost(it) for it in fixed[g]) + ((3.0 if self.barrier[g // 8] else 1.0) if g % 8 == 7 else 0) for g in range(NG)]
        self.flow = [[] for _ in range(NG)]
        self.writes = [[] for _ in range(NG)]
        self.stream([(self.task_params(), 8 * 7)], 0)
        self.stream([(self.task_scan1(), 8 * 13 + 7)], 8 * 7 + 2)
        due = lambda s: 8 * (s - 3) + 5
        tasks = [(self.task_mish(0, 0), due(self.first["A0"])), (self.task_mish(0, 1), due(min(self.first["A1"], self.start[2] + 1)))]
        later = [(self.task_mish(1, z), due(self.first["B" + str(z)]), 8 * 21 + 1) for z in range(2)]
        sc = self.task_scan2()
        cut = [i for i, x in enumerate(sc) if is_dsw(x)][1] + 1
        later = sorted(later + [(None, due(hfirst))], key=lambda t: t[1])
        at = [t[0] is None for t in later].index(True)
        later[at:at + 1] = [(self.task_carry() + sc[:cut], due(hfirst - 1), carry_from), (sc[cut:], due(hfirst))]
        rel = min(later[0][2], tasks[1][1])
        tasks[1] = (tasks[1][0], tasks[1][1], 0, rel)
        self.stream(tasks, 8 * 14 + 1)
        self.stream(later, rel)
        unpack = [f"v_and_b32 v{accO + x}, 0xffff0000, v{tmp + x // 2}" if x % 2 else f"v_lshlrev_b32 v{accO + x}, 16, v{tmp + x // 2}" for x in range(16)]
        self.unpack = (unpack, 8 * 38)

    def place(self, tasks, g0, level, commit):
        base = self.base if commit else list(self.base)
        ends, g, credit, had_valu = [], g0, max(0.0, level - base[g0]), True
        for t in tasks:
            for x in t[0]:
                if is_dsw(x):
                    s = g // 8
                    at = max(g + 1, 8 * s + self.last_read[s] + 1)
                    if at % 8 == 7 or at // 8 != s:
                        at = 8 * (s + 1) + self.last_read[s + 1] + 1
                    if at % 8 < 6 and base[at] >= 8:
                        at += 1
                    if at > t[1] + 1:
                        return None
                    base[at] += cost(x)
                    if commit:
                        self.writes[at].append(x)
                    continue
                while g < (t[2] if len(t) > 2 else 0) or credit < 0.5 * cost(x) or (is_mem(x) and had_valu):
                    g += 1
                    if g >= (t[3] if len(t) > 3 else t[1]):
                        return None
                    credit = min(credit, 1.0) + level - base[g]
                    had_valu = False
                credit -= cost(x)
                base[g] += cost(x)
                had_valu |= not callable(x) and txt(x).startswith("v_")
                if commit:
                    self.flow[g].append(x)
            ends.append(g)
        return ends

    def stream(self, tasks, g0):
        while tasks:
            best = (0.0, 0)
            for n in range(len(tasks)):
                level = best[0]
                while self.place(tasks[:n + 1], g0, level, False) is None:
                    level += 0.05
                    assert level < 100
                if level > best[0]:
                    best = (level, n)
            g0 = self.place(tasks[:best[1] + 1], g0, best[0], True)[-1]
            tasks = tasks[best[1] + 1:]

    def stages(self, s0, s1):
        e = self.e
        for s in range(s0, s1):
            e.comment(f"stage {s} {self.kind(s)}")
            for k, mf in enumerate(self.mfmas(s)):
                g = 8 * s + k
                e.where = f"s{s}.g{k}"
                e(mf)
                flow = list(self.flow[g])
                if k == 7 and s < 41:
                    nw = 0
                    while nw < len(e.ds) and not e.ds[-1 - nw][0]:
                        nw += 1
                    if self.o.get("fine") == 2:
                        c_, d_ = (0, 32) if s % 2 == 0 else (32, 0)
                        e.wait(lgkm=nw)
                        e.raw(f"s_memtime s[{c_}:{c_ + 1}]")
                        flow.append(lambda d_=d_, s=s: e.raw(f"v_writelane_b32 v7, s{d_}, {s}"))
                    e.wait(vm=e.vm_after(f"dma{s + 2}"), lgkm=nw)
                    if self.barrier[s]:
                        e("s_barrier")
                    if self.o.get("fine"):
                        a_, b_ = (28, 30) if s % 2 == 0 else (30, 28)
                        e.raw(f"s_memtime s[{a_}:{a_ + 1}]")
                        flow.append(lambda b_=b_, s=s: e.raw(f"v_writelane_b32 v0, s{b_}, {s}"))
                lead = []
                while flow and is_mem(flow[0]):
                    lead.append(flow.pop(0))
                mem = [it for it in self.fixed[g] if callable(it[-1]) or not txt(it[-1]).startswith("v_")]
                for it in mem + lead + self.writes[g] + [it for it in self.fixed[g] if it not in mem] + flow:
                    self.put(it)
            if s in (6, 13, 20, 26, 32, 38, 41):
                self.stamp()

    def ending(self, flags, sfx, ldf, plf, outf):
        o, e = self.o, self.e
        saved = copy.deepcopy((self.base, [list(x) for x in self.writes])), [list(x) for x in self.fixed], [list(x) for x in self.flow]
        flag = lambda i: [lambda: self.e.wait(vm=self.e.vm_after(f"send{i}")),
                          f"buffer_store_dwordx2 {V(vTagv, 2)}, v{vOne}, {S(sIn, 4)}, s{sFlagOut + i} offen {'sc1' if 'sc1' in flags[i] else ''}"]
        poll = lambda k: (f"buffer_load_dwordx2 {V(vPoll + 2 * k, 2)}, v{vFlag}, {S(sIn, 4)}, 0 offen {plf}", f"poll{k}")
        late = []
        for p in range(3):
            at = 8 * (self.done[p] + 1) + (o.get("flaglat", 40) if "sc1" in flags[p] else o.get("fastlat", 18))
            if at < 8 * 42:
                self.fixed[at].append(flag(p))
                self.base[at] += 4
            else:
                late.append(p)
        order = sorted(range(3), key=lambda p: self.done[p])
        for i, p in enumerate(order):
            g0 = 8 * (self.done[p] + 1) + 1
            span = min(o.get("sendspan", 12), 8 * (self.done[order[i + 1]] - self.done[p]) if i < 2 else o.get("lastspan", 7))
            self.stream([(self.task_send(p, flags[p]), g0 + span)], g0)
        self.stream([self.unpack], 8 * 37)
        self.gapload = list(self.base)
        self.stages(min(self.done) + 1, 42)
        (self.base, self.writes), self.fixed, self.flow = saved
        e.where = "tail"
        buf = [accS + 8 * p if p < 4 else accB + 8 * (p - 4) for p in range(6)]

        def check(k, mask):
            blk = Emit()
            blk(f"""
            L_poll{k}{sfx}:
            s_mov_b32 s{sC}, {o['spin']}
            L_poll{k}{sfx}_again:
            {txt(poll(k))}
            s_waitcnt vmcnt(0)
            v_cmp_ne_u64 vcc, {S(sTag, 2)}, {V(vPoll + 2 * k, 2)}
            s_and_b32 s{sA}, vcc_lo, {mask}
            s_cbranch_scc0 L_got{k}{sfx}
            s_sub_u32 s{sC}, s{sC}, 1
            s_cmp_lg_u32 s{sC}, 0
            s_cbranch_scc1 L_poll{k}{sfx}_again
            s_branch L_got{k}{sfx}
            """)
            self.cold.append(blk.text())
            e(f"v_cmp_ne_u64 vcc, {S(sTag, 2)}, {V(vPoll + 2 * k, 2)}\ns_and_b32 s{sA}, vcc_lo, {mask}\ns_cbranch_scc1 L_poll{k}{sfx}\nL_got{k}{sfx}:")

        def loads(ps):
            for p in ps:
                for z in range(2):
                    if p >= 4 and o["inout"]:
                        e(f"buffer_load_dwordx4 {V(buf[p] + 4 * z, 4)}, v{(vEld, cCnt)[p - 4]}, {S(sOut, 4)}, s{sRowOff + 4 * z} offen {ldf}")
                    else:
                        e(f"buffer_load_dwordx4 {V(buf[p] + 4 * z, 4)}, v{vLane16}, {S(sIn, 4)}, s{sRecv} offen offset:{1024 * z} {ldf}")
                e(f"s_add_u32 s{sRecv}, s{sRecv}, {32 * TILE - 8192 if p % 2 else 8192}")

        def adds(ps):
            for p in ps:
                for x in range(16):
                    e(f"v_dot2_f32_bf16 v{accO + x}, v{buf[p] + x // 2}, s{sSelHi if x % 2 else sSelLo}, v{accO + x}")

        for p in late[:-1]:
            self.put(flag(p))
        self.put([poll(0)])
        for p in late[-1:]:
            self.put(flag(p))
        self.stamp()
        check(0, 0xF)
        self.put([poll(1)])
        loads(range(4))
        self.stamp()
        check(1, 0x30)
        loads(range(4, 6))
        self.stamp()
        adds(range(6))
        for x in range(0, 16, 2):
            e(f"v_pk_mul_f32 {V(accO + x, 2)}, {V(accO + x, 2)}, {S(sLn2, 2)}")
        for x in range(16):
            e(f"buffer_store_dword v{accO + x}, v{vOut}, {S(sOut, 4)}, s{sRowOff + x // 2} offen offset:{1792 * (x % 2)} {outf}")
        e(f"""
        s_lshl2_add_u32 s{sA}, s{sG}, s{sW}
        s_lshl_b32 s{sA}, s{sA}, 5
        s_add_u32 s{sA}, s{sA}, s{sM}
        s_cmp_lg_u32 s{sA}, 31
        s_cbranch_scc1 L_fin{sfx}
        buffer_store_dwordx2 {V(vTagv, 2)}, v{vOne}, {S(sIn, 4)}, 0 offen sc1
        L_fin{sfx}:
        """)
        if o["stamps"]:
            e.wait(vm=0)
            self.stamp()
            e(f"""
            s_lshl2_add_u32 s{sA}, s{sT2}, s{sW}
            s_mul_i32 s{sA}, s{sA}, {8 * o['stamps']}
            s_add_u32 s{sA}, s{sA}, {STAMP_OFF}
            s_add_u32 s34, s34, s{sA}
            s_addc_u32 s35, s35, 0
            v_lshrrev_b32 v8, 2, v{vLane16}
            v_cmp_gt_u32 vcc, {8 * o['stamps']}, v8
            s_and_saveexec_b64 {S(sA, 2)}, vcc
            global_store_dword v8, v7, s[34:35]
            """)
        if o.get("fine"):
            e(f"""
            s_lshl2_add_u32 s{sA}, s2, s{sW}
            s_mul_i32 s{sA}, s{sA}, 512
            s_add_u32 s{sA}, s{sA}, {STAMP_OFF}
            s_add_u32 s34, s34, s{sA}
            s_addc_u32 s35, s35, 0
            v_lshrrev_b32 v8, 2, v{vLane16}
            global_store_dword v8, v7, s[34:35]
            global_store_dword v8, v0, s[34:35] offset:256
            """)
        e("s_endpgm")

    def helper(self):
        b = Emit()
        if not self.o["helpers"]:
            b("L_helper:\ns_endpgm")
            return b.text()
        b(f"""
        L_helper:
        s_lshl_b32 s{sC}, s2, 8
        v_add_u32 v3, s{sC}, v0
        s_waitcnt lgkmcnt(0)
        """)
        keep, self.e = self.e, b
        for s, p, size in ((40, pBre, 448 * 896), (44, pBim, 448 * 896), (48, pCre, 448 * 896), (52, pCim, 448 * 896), (60, pW1, 448 * 3584), (64, pW2, 1792 * 896)):
            self.srd(s, p, size)
        self.e = keep
        b(f"""
        v_lshrrev_b32 v4, 1, v3
        v_lshlrev_b32 v4, 7, v4
        v_and_b32 v5, 1, v3
        v_mov_b32 v8, {OOB}
        v_cmp_eq_u32 vcc, 0, v5
        v_cndmask_b32 v9, v8, v4, vcc
        v_cndmask_b32 v10, v4, v8, vcc
        buffer_load_dword v18, v9, s[40:43], 0 offen
        buffer_load_dword v11, v10, s[44:47], 0 offen
        v_lshlrev_b32 v4, 2, v4
        v_lshl_add_u32 v4, v5, 7, v4
        buffer_load_dword v12, v4, s[60:63], 0 offen
        buffer_load_dword v13, v4, s[60:63], 0 offen offset:256
        v_lshlrev_b32 v4, 7, v3
        s_mov_b32 s{sC}, 0x100000
        buffer_load_dword v14, v4, s[64:67], 0 offen
        buffer_load_dword v15, v4, s[64:67], s{sC} offen
        buffer_load_dword v16, v9, s[48:51], 0 offen
        buffer_load_dword v17, v10, s[52:55], 0 offen
        """)
        if self.o["preval"] is not None:
            keep, self.e = self.e, b
            self.srd(sOut, pOut, 2048 * 1792)
            self.srd(sIn, pWs, WS_SIZE)
            self.e = keep
            b(f"""
            s_lshl2_add_u32 s{sM}, s{sB}, s{sA}
            s_mul_i32 s{sD}, s{sM}, {7 * 256}
            s_add_u32 s{sD}, s{sD}, {WS_FLAG}
            s_mul_i32 s{sC}, s{sM}, {TILE}
            v_lshlrev_b32 v4, 7, v0
            v_min_u32 v6, {13 * 128}, v4
            v_add_u32 v5, {3 * 32768}, v4
            v_min_u32 v5, {TILE - 128}, v5
            buffer_load_dword v19, v6, {S(sIn, 4)}, s{sD} offen sc1
            """)
            n = 20
            for p in self.o.get("prepairs", (0, 1, 2)):
                srd, off = (sOut, 0) if p == 2 and self.o["inout"] else (sIn, WS_IN + 32 * TILE * p)
                for i in range(4):
                    b(f"s_add_u32 s{sD}, s{sC}, {off + (32768 * i if i < 3 else 0)}\nbuffer_load_dword v{n}, v{4 if i < 3 else 5}, {S(srd, 4)}, s{sD} offen {self.o['preval']}")
                    n += 1
        b("s_waitcnt vmcnt(0)\ns_endpgm")
        return b.text()

    def build(self):
        o = self.o
        self.prologue()
        self.plan()
        self.stages(0, min(self.done) + 1)
        slow = ""
        if o["xcc"]:
            self.e(f"s_cmp_lg_u32 s{sSlow}, {1000 if o['force_slow'] else 0}\ns_cbranch_scc1 L_slow")
            fork, n0, st0 = copy.deepcopy(self.e), len(self.e.out), self.nstamp
            self.ending(o["fast"], "", o["ldf"], o["plf"], o["outf"])
            hot, gl = self.e, self.gapload
            self.e, self.nstamp = fork, st0
            self.ending(["sc1"] * 3, "_s", "sc1", "sc1", "sc1")
            slow = "L_slow:\n" + "\n".join(self.e.out[n0:]) + "\n"
            self.e, self.gapload = hot, gl
        else:
            self.ending(["sc1"] * 3, "", "sc1", "sc1", "sc1")
            hot = self.e
        head, body = hot.text().split("HOPS:\n")
        rest = "L_hot_end:\n" + "".join(self.cold) + slow
        helper = self.helper() + "L_end:\n    s_endpgm\n"
        wrap = lambda b: single(b, 256, 256, LDS_BYTES, vgpr=512, sgpr=102, accum=256, header=HEADER)
        nb = sum(map(is_ins, body.split("\n")))
        body, widened, padded = align(body, lambda b: wrap(b + head + rest + helper), count=nb)
        if not o["hops"]:
            return wrap(head + "    s_branch L_body\n" + helper + ".p2align 6\nL_body:\n" + body + rest)
        lines, sz = body.split("\n"), sizes(wrap(body + head + rest + helper))
        out, off, k, pads = [], 0, 0, 0
        for l in lines:
            if is_ins(l):
                if off >= 4096 * (pads + 1):
                    pads += 1
                    out += [f"L_page{pads}:", f"    s_cbranch_execz L_back{(pads - 1) // 4}", "    s_nop 0"]
                    off += 8
                off += sz[k]
                k += 1
            out.append(l)
        hop = "    s_mov_b64 exec, 0\n"
        for r in range((pads + 3) // 4):
            for w in range(4):
                if 4 * r + w < pads:
                    hop += f"    s_cmp_eq_u32 s{sW}, {w}\n    s_cbranch_scc1 L_page{4 * r + w + 1}\n"
            hop += f"L_back{r}:\n"
        hop += "    s_mov_b64 exec, -1\n    s_branch L_body\n"
        self.info = f"widened {widened} padded {padded} pages {pads} body {off}"
        return wrap(head + hop + helper + ".p2align 12\nL_body:\n" + "\n".join(out) + rest)


if __name__ == "__main__":
    out = sys.argv[1]
    opt = eval("dict(%s)" % (sys.argv[2] if len(sys.argv) > 2 else ""))
    g = Gen(**opt)
    open(out, "w").write(g.build())
    if opt.get("verbose"):
        print("\n".join(g.e.log))
        for s in range(42):
            print(s, " ".join("%4.1f" % x for x in g.gapload[8 * s:8 * s + 8]), " est %d" % sum(max(32, 9 + 4 * x) for x in g.gapload[8 * s:8 * s + 8]))
        print("total est", sum(max(32, 9 + 4 * x) for x in g.gapload))
    print(out, "auto waits", g.e.auto_waits, "auto nops", g.e.auto_nops, "stamps", g.nstamp, getattr(g, "info", ""))
```
